```python
import torch

def _softmax(x, axis=-1):
    return torch.softmax(x, dim=axis)
def _gelu(x):
    return torch.nn.functional.gelu(x, approximate="tanh")
def _silu(x):
    return torch.nn.functional.silu(x)
def _sigmoid(x):
    return torch.sigmoid(x)
def _layernorm(x, axis=-1, eps=1e-5):
    m = x.mean(dim=axis, keepdim=True)
    v = x.var(dim=axis, keepdim=True, unbiased=False)
    return (x - m) / torch.sqrt(v + eps)
def _scatter_add(tgt, idx, src, axis=0):
    return tgt.clone().index_add_(axis, idx, src)
def _segment_sum(src, seg, n):
    out = torch.zeros((n,) + src.shape[1:], dtype=src.dtype)
    return out.index_add_(0, seg, src)
def _pad(x, pw):
    flat = tuple(v for pair in reversed(pw) for v in pair)
    return torch.nn.functional.pad(x, flat)

kernel_name = 'concat_heads__mha_block_cached__gqa_block_cached__near_ridge'

def setup_inputs():

    _w = (lambda a: (lambda t: t.to(torch.bfloat16) if t.is_floating_point() else t)(torch.as_tensor(a)))
    def _A_setup():
        B, Sq, D = 8, 160, 576
        H, Sk, Dh = 32, 1024, 128
        return {
            "x": _w((lambda *s: torch.randn(*s, dtype=torch.bfloat16) * 0.8)(B, Sq, D)),
            "k_cache": _w((lambda *s: torch.randn(*s, dtype=torch.bfloat16) * 0.8)(B, H, Sk, Dh)),
            "v_cache": _w((lambda *s: torch.randn(*s, dtype=torch.bfloat16) * 0.05)(B, H, Sk, Dh)),
            "wq": _w((lambda *s: torch.randn(*s, dtype=torch.bfloat16) * 0.8)(D, H * Dh) * (D ** -0.5)),
            "wo": _w((lambda *s: torch.randn(*s, dtype=torch.bfloat16) * 0.05)(H * Dh, D) * ((H * Dh) ** -0.5)),
        }
    _A_in = _A_setup()

    def _B_setup():
        B, Sq, D = 8, 160, 576
        Hq, Hkv, Sk, Dh = 32, 32, 1024, 128
        assert Hq % Hkv == 0, (Hq, Hkv)
        return {
            "x": _w((lambda *s: torch.randn(*s, dtype=torch.bfloat16) * 0.8)(B, Sq, D)),
            "k_cache": _w((lambda *s: torch.randn(*s, dtype=torch.bfloat16) * 0.8)(B, Hkv, Sk, Dh)),
            "v_cache": _w((lambda *s: torch.randn(*s, dtype=torch.bfloat16) * 0.05)(B, Hkv, Sk, Dh)),
            "wq": _w((lambda *s: torch.randn(*s, dtype=torch.bfloat16) * 0.8)(D, Hq * Dh) * (D ** -0.5)),
            "wo": _w((lambda *s: torch.randn(*s, dtype=torch.bfloat16) * 0.05)(Hq * Dh, D) * ((Hq * Dh) ** -0.5)),
        }
    _B_in = _B_setup()

    return {
        "A_x": _A_in["x"],
        "A_k_cache": _A_in["k_cache"],
        "A_v_cache": _A_in["v_cache"],
        "A_wq": _A_in["wq"],
        "A_wo": _A_in["wo"],
        "B_x": _B_in["x"],
        "B_k_cache": _B_in["k_cache"],
        "B_v_cache": _B_in["v_cache"],
        "B_wq": _B_in["wq"],
        "B_wo": _B_in["wo"],
    }

def reference(A_x, A_k_cache, A_v_cache, A_wq, A_wo, B_x, B_k_cache, B_v_cache, B_wq, B_wo):
    def _A_ref(x, k_cache, v_cache, wq, wo):
        B, Sq, D = x.shape
        H, Dh = 32, 128
        q = (lambda x, *d: x.permute(*d))((x @ wq).reshape(B, Sq, H, Dh), 0, 2, 1, 3)
        scores = torch.einsum("bhqd,bhkd->bhqk", q, k_cache) * (Dh ** -0.5)
        p = _softmax(scores, axis=-1)
        o = torch.einsum("bhqk,bhkd->bhqd", p, v_cache)
        return (lambda x, *d: x.permute(*d))(o, 0, 2, 1, 3).reshape(B, Sq, H * Dh) @ wo

    def _B_ref(x, k_cache, v_cache, wq, wo):
        B, Sq, D = x.shape
        Hq, Dh = 32, 128
        Hkv = k_cache.shape[1]
        rep = Hq // Hkv
        q = (lambda x, *d: x.permute(*d))((x @ wq).reshape(B, Sq, Hq, Dh), 0, 2, 1, 3)
        k = (lambda x, n, axis: torch.repeat_interleave(x, n, dim=axis))(k_cache, rep, axis=1)
        v = (lambda x, n, axis: torch.repeat_interleave(x, n, dim=axis))(v_cache, rep, axis=1)
        scores = torch.einsum("bhqd,bhkd->bhqk", q, k) * (Dh ** -0.5)
        p = _softmax(scores, axis=-1)
        o = torch.einsum("bhqk,bhkd->bhqd", p, v)
        return (lambda x, *d: x.permute(*d))(o, 0, 2, 1, 3).reshape(B, Sq, Hq * Dh) @ wo

    a = _A_ref(A_x, A_k_cache, A_v_cache, A_wq, A_wo)
    b = _B_ref(B_x, B_k_cache, B_v_cache, B_wq, B_wo)
    return torch.concatenate([a, b], axis=-1)
```

```python
import re

REG_RE = re.compile(r'^(v|a|s)(\d+)$')
RNG_RE = re.compile(r'^(v|a|s)\[(\d+):(\d+)\]$')

def parse_reg(tok):
    tok = tok.strip()
    neg = tok.lstrip('-')
    if neg.startswith('abs(') and neg.endswith(')'): neg = neg[4:-1]
    if neg.startswith('|') and neg.endswith('|'): neg = neg[1:-1]
    m = REG_RE.match(neg)
    if m: return [(m.group(1), int(m.group(2)))]
    m = RNG_RE.match(neg)
    if m: return [(m.group(1), i) for i in range(int(m.group(2)), int(m.group(3)) + 1)]
    if neg == 'vcc': return [('x', 'vcc')]
    if neg == 'exec': return [('x', 'exec')]
    if neg == 'm0': return [('x', 'm0')]
    return []

def split_ops(s):
    out, depth, cur = [], 0, ''
    for ch in s:
        if ch == '[' or ch == '(': depth += 1
        if ch == ']' or ch == ')': depth -= 1
        if ch == ',' and depth == 0:
            out.append(cur.strip()); cur = ''
        else: cur += ch
    if cur.strip(): out.append(cur.strip())
    return out

TRANS = ('v_exp_f32', 'v_log_f32', 'v_rcp_f32', 'v_rsq_f32', 'v_sqrt_f32', 'v_sin_f32', 'v_cos_f32')
NO_DST_S = ('s_cmp', 's_cbranch', 's_waitcnt', 's_barrier', 's_nop', 's_branch', 's_setprio', 's_endpgm', 's_sleep', 's_setpc', 's_bitcmp')

class Inst:
    __slots__ = ('text', 'mn', 'kind', 'dst', 'src', 'tag', 'srctag', 'nop', 'vm', 'lg', 'mfma_c')
    def __init__(self, text, tag=None, srctag=None):
        self.text = text; self.tag = tag; self.srctag = srctag
        t = text.split(';')[0].strip()
        self.nop = 1; self.vm = None; self.lg = None; self.mfma_c = []
        if t.endswith(':') or not t or t.startswith('.'):
            self.mn = ''; self.kind = 'label' if t.endswith(':') else 'dir'; self.dst = []; self.src = []; self.nop = 0
            return
        parts = t.split(None, 1)
        mn = parts[0]; rest = parts[1] if len(parts) > 1 else ''
        self.mn = mn
        ops = split_ops(rest)
        if ops:
            last = ops[-1].split()
            ops[-1] = last[0]
            mods = last[1:]
        else: mods = []
        R = [parse_reg(o) for o in ops]
        flat = lambda L: [r for x in L for r in x]
        if mn.startswith('v_mfma'):
            self.kind = 'mfma'; self.dst = R[0]; self.src = flat(R[1:]); self.mfma_c = R[3]
        elif mn.startswith('v_cmp'):
            self.kind = 'valu'; self.dst = R[0]; self.src = flat(R[1:])
        elif mn.startswith('v_permlane'):
            self.kind = 'valu'; self.dst = flat(R); self.src = flat(R)
        elif mn.startswith(('v_fmac', 'v_dot2c', 'v_pk_fmac')):
            self.kind = 'valu'; self.dst = R[0]; self.src = flat(R)
        elif mn.startswith('v_cndmask'):
            self.kind = 'valu'; self.dst = R[0]; self.src = flat(R[1:])
        elif mn.startswith('v_'):
            self.kind = 'valu'; self.dst = R[0]; self.src = flat(R[1:])
        elif mn.startswith('ds_read') or mn.startswith('ds_bpermute'):
            self.kind = 'ds'; self.dst = R[0]; self.src = flat(R[1:])
        elif mn.startswith('ds_'):
            self.kind = 'ds'; self.dst = []; self.src = flat(R)
        elif mn.startswith(('buffer_load', 'global_load')):
            self.kind = 'vmem'
            if 'lds' in mods or '_lds_' in mn:
                self.dst = []; self.src = flat(R) + [('x', 'm0')]
            else:
                self.dst = R[0]; self.src = flat(R[1:])
        elif mn.startswith(('buffer_store', 'global_store', 'buffer_atomic', 'global_atomic')):
            self.kind = 'vmem'; self.dst = []; self.src = flat(R)
            if 'sc0' in mods and 'atomic' in mn: self.dst = R[0]
        elif mn.startswith(('buffer_wbl2', 'buffer_inv')):
            self.kind = 'vmem'; self.dst = []; self.src = []
        elif mn.startswith(('s_load', 's_memtime', 's_memrealtime', 's_buffer_load')):
            self.kind = 'smem'; self.dst = R[0]; self.src = flat(R[1:])
        elif mn == 's_waitcnt':
            self.kind = 'wait'; self.dst = []; self.src = []
            m = re.search(r'vmcnt\((\d+)\)', t); self.vm = int(m.group(1)) if m else None
            m = re.search(r'lgkmcnt\((\d+)\)', t); self.lg = int(m.group(1)) if m else None
        elif mn == 's_nop':
            self.kind = 'nop'; self.dst = []; self.src = []; self.nop = int(ops[0], 0) + 1
        elif mn.startswith(NO_DST_S):
            self.kind = 'salu'; self.dst = []; self.src = flat(R)
        elif mn.startswith('s_'):
            self.kind = 'salu'; self.dst = R[0]; self.src = flat(R[1:])
            if 'saveexec' in mn: self.dst = self.dst + [('x', 'exec')]
        else:
            raise ValueError('unknown instruction: ' + text)

class Asm:
    def __init__(self, autofix=True, hist=None):
        self.ins = []; self.autofix = autofix; self.nfix = 0
        self.hist = list(hist[-60:]) if hist else []
    def __call__(self, text, tag=None, srctag=None):
        for line in text.split('\n'):
            line = line.strip()
            if not line: continue
            i = Inst(line, tag, srctag)
            if self.autofix and i.kind not in ('label', 'dir', 'nop', 'wait'):
                n = needed_nops(self.hist + self.ins[-60:], i)
                if n > 0:
                    self.nfix += n
                    while n > 0:
                        k = min(n, 16); self.ins.append(Inst('s_nop %d' % (k - 1))); n -= k
            self.ins.append(i)
    def raw(self, inst): self.ins.append(inst)
    def extend(self, other): self.ins.extend(other.ins)
    def text(self):
        out = []
        for i in self.ins:
            out.append(i.text if i.kind in ('label', 'dir') else '    ' + i.text)
        return '\n'.join(out) + '\n'
    def count(self, kind=None):
        return sum(1 for i in self.ins if (kind is None and i.kind not in ('label', 'dir')) or i.kind == kind)

def is_vgpr(r): return r[0] in ('v', 'a')

def pair_req(ia, ib):
    out = []
    sb = set(ib.src); db = set(ib.dst); da = set(ia.dst)
    if ia.kind == 'valu':
        vw = {r for r in da if is_vgpr(r)}
        sw = {r for r in da if r[0] == 's' or r == ('x', 'vcc')}
        if ib.kind == 'mfma' and vw & sb: out.append((2, 'valu->mfma'))
        if ib.mn.startswith('v_permlane') and vw & sb: out.append((2, 'valu->permlane'))
        if ib.mn.startswith(('v_readfirstlane', 'v_readlane')) and vw & sb: out.append((1, 'valu->readlane'))
        if '_dpp' in ib.mn or 'row_' in ib.text or 'quad_perm' in ib.text:
            if vw & sb: out.append((2, 'valu->dpp'))
        if ia.mn.startswith(TRANS) and ib.kind == 'valu' and not ib.mn.startswith(TRANS) and vw & sb: out.append((1, 'trans->valu'))
        if ia.mn.startswith(TRANS) and ib.kind in ('ds', 'vmem', 'mfma') and vw & sb: out.append((1, 'trans->mem/mfma'))
        if sw:
            if ib.kind == 'vmem' and sw & sb: out.append((5, 'valu sgpr->vmem'))
            if ib.kind == 'valu' and (sw & sb or (('x', 'vcc') in sw and ib.mn.startswith('v_cndmask') and 'vcc' in ib.text)): out.append((2, 'valu sgpr->valu'))
            if ib.kind in ('salu', 'smem') and (sw & sb or (('x', 'vcc') in sw and 'vcc' in ib.mn)): out.append((4, 'valu sgpr->salu (pad)'))
        if ('x', 'exec') in da and ib.kind in ('mfma',): out.append((4, 'exec->mfma'))
    if ia.kind == 'salu' and ('x', 'exec') in da and ib.kind == 'mfma': out.append((4, 'exec->mfma'))
    if ia.kind == 'mfma':
        small = '16x16' in ia.mn
        p_raw = 8 if small else 12
        p_ovl = 6 if small else 10
        p_war = 3 if small else 7
        if ib.kind in ('valu', 'ds', 'vmem'):
            if da & (sb | db): out.append((p_raw, 'mfma D->valu/mem'))
            if ib.kind == 'valu' and set(ia.mfma_c) & db: out.append((p_war, 'mfma C WAR valu'))
        if ib.kind == 'mfma':
            ab = sb - set(ib.mfma_c)
            if da & ab: out.append((p_raw, 'mfma D->mfma A/B'))
            cb = set(ib.mfma_c)
            if da & cb and not (cb == da and ia.mn == ib.mn): out.append((p_ovl, 'mfma D->mfma C partial'))
            if da & db and not (da & cb): out.append((p_ovl, 'mfma D->mfma D WAW'))
    if ia.kind == 'salu' and ('x', 'm0') in da and ('x', 'm0') in sb and ib.kind == 'vmem': out.append((1, 'm0->lds dma'))
    if ia.kind == 'vmem' and ia.mn.startswith(('buffer_store_dwordx4', 'buffer_store_dwordx3', 'global_store_dwordx4')):
        data = {r for r in ia.src if is_vgpr(r)}
        if ib.kind == 'valu' and data & db: out.append((2, 'store data WAR'))
        if ib.kind in ('ds', 'vmem', 'mfma') and data & db: out.append((1, 'store data WAR any'))
    return out

def needed_nops(hist, ib):
    d = 0; need = 0
    for ia in reversed(hist):
        if ia.kind in ('label', 'dir'): continue
        for req, why in pair_req(ia, ib):
            if req - d > need: need = req - d
        d += ia.nop
        if d >= 20: break
    return need

def check_hazards(ins, name='', verbose=True):
    probs = []
    L = [i for i in ins if i.kind not in ('label', 'dir')]
    for b in range(len(L)):
        d = 0
        for a in range(b - 1, -1, -1):
            for req, why in pair_req(L[a], L[b]):
                if d < req: probs.append('%s: need %d have %d: [%s] -> [%s] (%s)' % (name, req, d, L[a].text, L[b].text, why))
            d += L[a].nop
            if d >= 20: break
    return probs

def check_waits(ins, name='', init_lg=(), init_vm=()):
    probs = []
    lg = list(init_lg)
    vm = list(init_vm)
    smem_pending = set()
    for i in ins:
        if i.kind in ('label', 'dir'): continue
        use = set(i.src) | set(i.dst)
        if i.kind == 'wait':
            if i.lg is not None:
                if smem_pending and i.lg == 0: smem_pending = set()
                while len(lg) > i.lg: lg.pop(0)
            if i.vm is not None:
                while len(vm) > i.vm: vm.pop(0)
            continue
        for e in lg:
            if e and (e & use): probs.append('%s: LGKM pending regs used by [%s]' % (name, i.text)); break
        for (tg, e) in vm:
            if e and (e & use): probs.append('%s: VM pending regs used by [%s]' % (name, i.text)); break
        if smem_pending & use and i.kind != 'smem': probs.append('%s: SMEM pending regs used by [%s]' % (name, i.text))
        if i.srctag is not None:
            tags = i.srctag if isinstance(i.srctag, (list, set)) else [i.srctag]
            for (tg, e) in vm:
                if tg in tags: probs.append('%s: DMA tag %s not landed for [%s]' % (name, tg, i.text)); break
        if i.kind == 'ds': lg.append(set(i.dst))
        elif i.kind == 'smem': smem_pending |= set(i.dst); lg.append(set())
        elif i.kind == 'vmem': vm.append((i.tag, set(i.dst)))
    return probs

class Q:
    def __init__(self):
        self.lg = []; self.vm = []
    def ds(self, tag): self.lg.append(tag)
    def vmem(self, tag): self.vm.append(tag)
    def need_lg(self, tags):
        idx = -1
        for k, t in enumerate(self.lg):
            if t in tags: idx = k
        if idx < 0: return None
        n = len(self.lg) - 1 - idx
        n = min(n, 15)
        self.lg = self.lg[len(self.lg) - n:] if n else []
        return n
    def need_vm(self, tags):
        idx = -1
        for k, t in enumerate(self.vm):
            if t in tags: idx = k
        if idx < 0: return None
        n = len(self.vm) - 1 - idx
        n = min(n, 63)
        self.vm = self.vm[len(self.vm) - n:] if n else []
        return n
```

```python
from asmlib import *
MF = 'v_mfma_f32_16x16x32_bf16'
def vr(b, n=1): return 'v%d' % b if n == 1 else 'v[%d:%d]' % (b, b + n - 1)
def ar(b, n=1): return 'a%d' % b if n == 1 else 'a[%d:%d]' % (b, b + n - 1)
def sr(b, n=1): return 's%d' % b if n == 1 else 's[%d:%d]' % (b, b + n - 1)
OFRAG_BYTES = 2 * 8 * 10 * 32 * 4 * 1024
PART_OFF = 0x2000000
PART_TASK = 96 * 1024
NB = 5
STG = 24576
B_LDS = NB * STG

class GenB:
    def __init__(self, name='outproj_kernel', prof=False, opts=None):
        self.a = Asm(); self.q = Q(); self.name = name; self.prof = prof; self.opts = opts or {}
    def wait(self, lg=None, vm=None):
        parts = []
        if vm is not None:
            n = self.q.need_vm(vm)
            if n is not None: parts.append('vmcnt(%d)' % n)
        if lg is not None:
            n = self.q.need_lg(lg)
            if n is not None: parts.append('lgkmcnt(%d)' % n)
        if parts: self.a('s_waitcnt ' + ' '.join(parts))
    def ds(self, text, tag, srctag=None):
        self.a(text, srctag=srctag); self.q.ds(tag)
    def build(self):
        a = self.a; n = self.name
        sWo, sOf, sP = 4, 8, 12
        sWV, sBR, sKS, sRG, sNG, sROT = 16, 17, 18, 19, 20, 21
        sT0, sT1, sT2 = 22, 23, 24
        sWB, sOB, sM0, sSO, sSO2, sST = 25, 26, 27, 28, 29, 30
        sPB = 31
        sKA = 36
        vACC = 0
        vAF = 96
        vBF = 128
        vOFW = 192
        vAW = 196
        vL16 = 208; vLANE = 209
        a('s_cmp_ge_u32 s2, 240'); a('s_cbranch_scc1 L_%s_end' % n)
        a('s_load_dwordx2 %s, s[0:1], 32' % sr(sKA, 2)); a('s_load_dwordx2 %s, s[0:1], 72' % sr(sKA + 2, 2)); a('s_load_dwordx2 %s, s[0:1], 96' % sr(sKA + 4, 2))
        a('v_lshrrev_b32 v1, 6, v0'); a('v_and_b32 %s, 63, v0' % vr(vLANE)); a('v_readfirstlane_b32 %s, v1' % sr(sWV))
        a('s_lshr_b32 %s, s2, 2' % sr(sBR)); a('s_and_b32 %s, %s, 1' % (sr(sBR), sr(sBR))); a('s_and_b32 %s, s2, 3' % sr(sKS))
        a('s_lshr_b32 %s, s2, 3' % sr(sT0))
        a('s_mul_i32 %s, %s, 43' % (sr(sRG), sr(sT0))); a('s_lshr_b32 %s, %s, 7' % (sr(sRG), sr(sRG)))
        a('s_mul_i32 %s, %s, 3' % (sr(sT1), sr(sRG))); a('s_sub_u32 %s, %s, %s' % (sr(sNG), sr(sT0), sr(sT1)))
        a('s_and_b32 %s, %s, 15' % (sr(sROT), sr(sT0)))
        a('s_waitcnt lgkmcnt(0)')
        a('s_cmp_eq_u32 %s, 0' % sr(sBR))
        a('s_cselect_b32 %s, %s, %s' % (sr(sWo), sr(sKA), sr(sKA + 2))); a('s_cselect_b32 %s, %s, %s' % (sr(sWo + 1), sr(sKA + 1), sr(sKA + 3)))
        a('s_mov_b32 %s, %d' % (sr(sWo + 2), 4096 * 1152)); a('s_mov_b32 %s, 0x20000' % sr(sWo + 3))
        a('s_mov_b32 %s, %s' % (sr(sOf), sr(sKA + 4))); a('s_mov_b32 %s, %s' % (sr(sOf + 1), sr(sKA + 5)))
        a('s_mov_b32 %s, %d' % (sr(sOf + 2), OFRAG_BYTES)); a('s_mov_b32 %s, 0x20000' % sr(sOf + 3))
        a('s_add_u32 %s, %s, %d' % (sr(sP), sr(sKA + 4), PART_OFF)); a('s_addc_u32 %s, %s, 0' % (sr(sP + 1), sr(sKA + 5)))
        a('s_mov_b32 %s, %d' % (sr(sP + 2), 240 * PART_TASK)); a('s_mov_b32 %s, 0x20000' % sr(sP + 3))
        a('s_lshl_b32 %s, %s, 10' % (sr(sT0), sr(sKS))); a('s_lshl_b32 %s, %s, 4' % (sr(sT1), sr(sWV))); a('s_add_u32 %s, %s, %s' % (sr(sT0), sr(sT0), sr(sT1)))
        a('s_mul_i32 %s, %s, 1152' % (sr(sT0), sr(sT0))); a('s_mul_i32 %s, %s, 384' % (sr(sT1), sr(sNG))); a('s_add_u32 %s, %s, %s' % (sr(sWB), sr(sT0), sr(sT1)))
        a('s_mul_i32 %s, %s, 80' % (sr(sT0), sr(sBR))); a('s_lshl_b32 %s, %s, 3' % (sr(sT1), sr(sRG))); a('s_add_u32 %s, %s, %s' % (sr(sT0), sr(sT0), sr(sT1)))
        a('s_lshl_b32 %s, %s, 1' % (sr(sT1), sr(sWV))); a('s_add_u32 %s, %s, %s' % (sr(sT0), sr(sT0), sr(sT1)))
        a('s_lshl_b32 %s, %s, 17' % (sr(sT0), sr(sT0))); a('s_lshl_b32 %s, %s, 15' % (sr(sT1), sr(sKS))); a('s_add_u32 %s, %s, %s' % (sr(sOB), sr(sT0), sr(sT1)))
        a('s_mul_i32 %s, %s, 6144' % (sr(sM0), sr(sWV)))
        a('s_mul_i32 %s, s2, %d' % (sr(sPB), PART_TASK)); a('s_mul_i32 %s, %s, 24576' % (sr(sT0), sr(sWV))); a('s_add_u32 %s, %s, %s' % (sr(sPB), sr(sPB), sr(sT0)))
        L = vr(vLANE)
        a('v_lshlrev_b32 %s, 4, %s' % (vr(vL16), L))
        for k in range(3):
            a('v_add_u32 v2, %d, %s' % (64 * k, L))
            a('v_mul_u32_u24 v3, 2731, v2'); a('v_lshrrev_b32 v3, 16, v3')
            a('v_mul_u32_u24 v4, 24, v3'); a('v_sub_u32 v4, v2, v4')
            a('v_lshrrev_b32 v5, 1, v3'); a('v_and_b32 v5, 3, v5'); a('v_lshlrev_b32 v5, 1, v5'); a('v_xor_b32 v4, v4, v5')
            a('v_mul_u32_u24 v3, 1152, v3'); a('v_lshl_add_u32 %s, v4, 4, v3' % vr(vOFW + k))
        a('v_lshrrev_b32 v1, 4, %s' % L); a('v_and_b32 v2, 15, %s' % L); a('v_lshrrev_b32 v6, 2, v2'); a('v_and_b32 v7, 3, v2')
        a('v_lshl_add_u32 v8, v1, 2, v6')
        a('v_lshrrev_b32 v9, 1, v8'); a('v_and_b32 v9, 3, v9')
        a('v_mul_u32_u24 v8, 384, v8'); a('v_lshl_add_u32 v8, v7, 3, v8')
        for t in range(4):
            a('v_xor_b32 v10, %d, v9' % t); a('v_lshl_add_u32 %s, v10, 5, v8' % vr(vAW + t))
            for st in (1, 2): a('v_add_u32 %s, %d, %s' % (vr(vAW + 4 * st + t), st * 2 * STG, vr(vAW + t)))
        def stage_off_ops(sg, dst, mul, base):
            return ['s_add_u32 %s, %s, %d' % (sr(sT0), sr(sROT), sg), 's_and_b32 %s, %s, 15' % (sr(sT0), sr(sT0)),
                    's_mul_i32 %s, %s, %d' % (sr(sT0), sr(sT0), mul), 's_add_u32 %s, %s, %s' % (sr(dst), sr(sT0), sr(base))]
        def w_ops(sg):
            ops = []
            for k in range(6):
                pre = []
                if k == 0: pre = stage_off_ops(sg, sST, 64 * 1152, sWB) + ['s_add_u32 m0, %s, %d' % (sr(sM0), (sg % NB) * STG)]
                if k == 3: pre = ['s_add_u32 m0, %s, %d' % (sr(sM0), (sg % NB) * STG + 3072)]
                kk = k % 3
                pre.append('s_add_u32 %s, %s, %d' % (sr(sSO), sr(sST), (k // 3) * 8 * 1152 - kk * 1024 + 4096))
                ops.append((pre, 'buffer_load_dwordx4 %s, %s, %s offen offset:%d lds' % (vr(vOFW + kk), sr(sWo, 4), sr(sSO), kk * 1024), ('W', sg)))
            return ops
        a('s_sub_u32 %s, %s, 4096' % (sr(sWo), sr(sWo))); a('s_subb_u32 %s, %s, 0' % (sr(sWo + 1), sr(sWo + 1)))
        a('s_mov_b32 %s, %d' % (sr(sWo + 2), 4096 * 1152 + 4096))
        def b_ops(kap):
            sg, s = kap >> 1, kap & 1
            ops = []
            for e in range(2):
                pre = []
                if e == 0:
                    pre = stage_off_ops(sg, sSO2, 2048, sOB)
                    if s: pre.append('s_add_u32 %s, %s, 1024' % (sr(sSO2), sr(sSO2)))
                else: pre = ['s_add_u32 %s, %s, 131072' % (sr(sSO2), sr(sSO2))]
                ops.append((pre, 'buffer_load_dwordx4 %s, %s, %s, %s offen' % (vr(vBF + 4 * ((kap % 8) * 2 + e), 4), vr(vL16), sr(sOf, 4), sr(sSO2)), ('B', kap)))
            return ops
        def do(op):
            pre, txt, tag = op
            for p in pre: a(p)
            if pre and 'm0' in pre[-1]: a('s_nop 0')
            a(txt, tag=tag); self.q.vmem(tag)
        LB = 6
        pro = w_ops(0) + b_ops(0) + b_ops(1) + w_ops(1) + b_ops(2) + b_ops(3) + w_ops(2) + b_ops(4) + b_ops(5) + w_ops(3)
        for op in pro: do(op)
        NM = 32 * 24; LA = 6
        def aread(ai):
            kap, nt = ai // 12, ai % 12
            sg, s = kap >> 1, kap & 1
            buf = sg % NB
            imm = (buf & 1) * STG + 32 * s * 384 + (nt & ~3) * 32
            for z in range(2):
                self.ds('ds_read_b64_tr_b16 %s, %s offset:%d' % (vr(vAF + 4 * (ai % 8) + 2 * z, 2), vr(vAW + 4 * (buf >> 1) + (nt & 3)), imm + 16 * z * 384), ('A', ai), srctag=('W', sg))
        issue = {}; bar_at = {}
        for sg in range(16):
            m0 = 48 * sg
            gbar = m0 - 2 * LA + 4 if sg > 0 else -1
            bar_at[gbar] = sg
            for ai in range(m0 // 2, m0 // 2 + 24):
                g = 2 * (ai - LA)
                if g < gbar: g = gbar + (ai - m0 // 2) // 2 if sg > 0 else gbar
                issue.setdefault(g, []).append(ai)
        pend = []
        for g in range(-1, NM):
            if g >= 0:
                kap, nt, e = g // 24, (g % 24) // 2, g % 2
                self.wait(lg=[('A', g // 2)], vm=[('B', kap)])
                d = vr(vACC + (e * 12 + nt) * 4, 4)
                a('%s %s, %s, %s, %s' % (MF, d, vr(vAF + 4 * ((g // 2) % 8), 4), vr(vBF + 4 * ((kap % 8) * 2 + e), 4), '0' if kap == 0 else d))
                if g % 24 == 23 and kap + LB < 32: pend += b_ops(kap + LB)
            if g in bar_at:
                sg = bar_at[g]
                self.wait(vm=[('W', sg)])
                self.q.lg = []; a('s_waitcnt lgkmcnt(0)')
                a('s_barrier')
                if sg + NB - 1 < 16: pend += w_ops(sg + NB - 1)
            for ai in issue.get(g, []): aread(ai)
            if pend and g % 3 == 1 and g not in bar_at: do(pend.pop(0))
        assert not pend
        a('s_nop 7')
        pol = self.opts.get('ppol', '')
        for e in range(2):
            for nt in range(12):
                t = e * 12 + nt
                if t % 4 == 0: a('s_add_u32 %s, %s, %d' % (sr(sSO), sr(sPB), t * 1024))
                a('buffer_store_dwordx4 %s, %s, %s, %s offen offset:%d%s' % (vr(vACC + 4 * t, 4), vr(vL16), sr(sP, 4), sr(sSO), (t % 4) * 1024, (' ' + pol) if pol else ''))
        a('L_%s_end:' % n); a('s_endpgm')
        return a

class GenC:
    def __init__(self, name='reduce_kernel'):
        self.a = Asm(); self.name = name
    def build(self):
        a = self.a; n = self.name
        sP, sOut = 4, 8
        a('s_cmp_ge_u32 s2, 720'); a('s_cbranch_scc1 L_%s_end' % n)
        a('s_load_dwordx2 s[12:13], s[0:1], 96'); a('s_load_dwordx2 s[14:15], s[0:1], 80')
        a('v_lshrrev_b32 v1, 6, v0'); a('v_and_b32 v2, 63, v0'); a('v_readfirstlane_b32 s16, v1')
        a('s_lshl_b32 s17, s2, 2'); a('s_add_u32 s17, s17, s16')
        a('s_mul_i32 s18, s17, 3641'); a('s_lshr_b32 s18, s18, 16')
        a('s_mul_i32 s19, s18, 18'); a('s_sub_u32 s19, s17, s19')
        a('s_cmp_ge_u32 s18, 80'); a('s_cselect_b32 s20, 1, 0')
        a('s_mul_i32 s21, s20, 80'); a('s_sub_u32 s21, s18, s21')
        a('s_lshr_b32 s22, s21, 3')
        a('s_lshr_b32 s23, s21, 1'); a('s_and_b32 s23, s23, 3')
        a('s_and_b32 s24, s21, 1')
        a('s_mul_i32 s25, s19, 43'); a('s_lshr_b32 s25, s25, 8')
        a('s_mul_i32 s26, s25, 6'); a('s_sub_u32 s26, s19, s26'); a('s_lshl_b32 s26, s26, 1')
        a('s_mul_i32 s27, s22, 3'); a('s_add_u32 s27, s27, s25'); a('s_lshl_b32 s27, s27, 3'); a('s_lshl_b32 s28, s20, 2'); a('s_add_u32 s27, s27, s28')
        a('s_mul_i32 s27, s27, %d' % PART_TASK); a('s_mul_i32 s28, s23, 24576'); a('s_add_u32 s27, s27, s28')
        a('s_mul_i32 s28, s24, 12'); a('s_add_u32 s28, s28, s26'); a('s_lshl_b32 s28, s28, 10'); a('s_add_u32 s27, s27, s28')
        a('s_waitcnt lgkmcnt(0)')
        a('s_add_u32 s4, s12, %d' % PART_OFF); a('s_addc_u32 s5, s13, 0'); a('s_mov_b32 s6, %d' % (240 * PART_TASK)); a('s_mov_b32 s7, 0x20000')
        a('s_mov_b32 s8, s14'); a('s_mov_b32 s9, s15'); a('s_mov_b32 s10, %d' % (8 * 160 * 1152 * 2)); a('s_mov_b32 s11, 0x20000')
        a('v_lshlrev_b32 v3, 4, v2')
        for ks in range(4):
            if ks: a('s_add_u32 s27, s27, %d' % PART_TASK)
            for t in range(2):
                a('buffer_load_dwordx4 v[%d:%d], v3, s[4:7], s27 offen offset:%d' % (8 + 8 * ks + 4 * t, 11 + 8 * ks + 4 * t, t * 1024))
        a('v_and_b32 v4, 15, v2'); a('v_lshrrev_b32 v5, 4, v2')
        a('s_lshl_b32 s29, s21, 4'); a('v_add_u32 v4, s29, v4'); a('v_mul_u32_u24 v4, 2304, v4')
        a('v_and_b32 v6, 1, v5'); a('v_lshlrev_b32 v6, 5, v6'); a('v_lshrrev_b32 v7, 1, v5'); a('v_lshl_add_u32 v6, v7, 4, v6')
        a('v_add_u32 v4, v4, v6')
        a('s_mul_i32 s30, s20, 1152'); a('s_mul_i32 s31, s25, 384'); a('s_add_u32 s30, s30, s31'); a('s_lshl_b32 s31, s26, 5'); a('s_add_u32 s30, s30, s31')
        a('s_waitcnt vmcnt(0)')
        for r in range(0, 8, 2):
            a('v_pk_add_f32 v[%d:%d], v[%d:%d], v[%d:%d]' % (8 + r, 9 + r, 8 + r, 9 + r, 16 + r, 17 + r))
            a('v_pk_add_f32 v[%d:%d], v[%d:%d], v[%d:%d]' % (24 + r, 25 + r, 24 + r, 25 + r, 32 + r, 33 + r))
        for r in range(0, 8, 2):
            a('v_pk_add_f32 v[%d:%d], v[%d:%d], v[%d:%d]' % (8 + r, 9 + r, 8 + r, 9 + r, 24 + r, 25 + r))
        for r in range(4): a('v_cvt_pk_bf16_f32 v%d, v%d, v%d' % (40 + r, 8 + 2 * r, 9 + 2 * r))
        a('s_nop 1')
        a('v_permlane16_swap_b32 v40, v42'); a('v_permlane16_swap_b32 v41, v43')
        a('s_nop 1')
        a('buffer_store_dwordx4 v[40:43], v4, s[8:11], s30 offen')
        a('L_%s_end:' % n); a('s_endpgm')
        return a

if __name__ == '__main__':
    g = GenB(); asm = g.build()
    print(asm.count(), 'instructions', 'mfma', asm.count('mfma'), 'autofix', asm.nfix)
    pr = check_hazards(asm.ins, 'B'); print(len(pr), 'hazards'); print('\n'.join(pr[:10]))
    pr = check_waits(asm.ins, 'B'); print(len(pr), 'waits'); print('\n'.join(pr[:10]))
    c = GenC(); asm = c.build()
    print(asm.count(), check_hazards(asm.ins, 'C'), check_waits(asm.ins, 'C'))
```

```python
from asmlib import *
import struct, math

LDS_BYTES = 163840
PAIR = 49152
VOFF = 24576
SCR = 98304
QREG = SCR
XBUF = [SCR + i * 20480 for i in range(3)]
WBUF = [16384, VOFF + 16384, PAIR + 16384, PAIR + VOFF + 16384]
RBUF = [SCR + 40960, SCR + 40960 + 0]
EXB = [SCR, SCR + 16384]
LAREA = SCR + 40960
CSCALE = struct.unpack('<I', struct.pack('<f', math.log2(math.e) / math.sqrt(128.0)))[0]
OFRAG_BYTES = 2 * 8 * 10 * 32 * 4 * 1024

sK, sV, sX, sW, sO = 4, 8, 12, 16, 20
sWV = 24
sKB = 25
sA, sB, sC = 26, 27, 28
sTAU = 29
sOFFK, sOFFV = 30, 31
sROT = 32
sT0, sT1, sT2, sT3 = 33, 34, 35, 36
sITEM = 37
sLOOP = 38
sWOFF = 39
sCC = 40
sXW = 41
sXC = 42
sWC = 43
sSO = 44
sSO2 = 45
sOBASE = 46
sH = 47
sBP = 48
sBR = 49
sPAIR = 50
sKD = 52
sVD = 53
sCS = 54
sOITEM = 55
sKA = 56
sVB = 76
sKH, sQH = 77, 78
vS = [0, 8]
vP = [16, 20]
vKF = 24
vVF = 56
vQ2 = 88
vL = 128
vAK, vAV, vAQ = 133, 134, 135
vOFK = 136
vOFV = 140
vT = 142
vM0, vM1, vM2, vM3, vM4, vM5 = 150, 151, 152, 153, 154, 155
vR = 160
def aO(j, dt): return (j * 8 + dt) * 4
def aQ(j, s): return 160 + (j * 4 + s) * 4
vACC = 160 - 160
vBB = 192
vAB = 224
vOFX, vOFW, vOFX2 = 240, 241, 242
vAX = 244
vAW = 248
vLANE = 252
vQK = 160

def vr(b, n=1): return 'v%d' % b if n == 1 else 'v[%d:%d]' % (b, b + n - 1)
def ar(b, n=1): return 'a%d' % b if n == 1 else 'a[%d:%d]' % (b, b + n - 1)
def sr(b, n=1): return 's%d' % b if n == 1 else 's[%d:%d]' % (b, b + n - 1)
MF = 'v_mfma_f32_16x16x32_bf16'

vAK, vAV, vAQ = 160, 161, 162
vOFK = 164
vOFV = 168
vL = 170
vT = 176
vM0, vM1, vM2, vM3, vM4, vM5 = 184, 185, 186, 187, 188, 189
vPS0, vPS1, vPZ = 190, 191, 183
vR = 192

class GenG:
    def __init__(self, name='attn_kernel', nt=True, ngrid=256, prof=False, ostore='', opts=None):
        self.a = Asm(); self.q = Q(); self.name = name; self.nt = ' nt' if nt else ''
        self.ngrid = ngrid; self.prof = prof; self.ostore = ostore; self.opts = opts or {}
    def wait(self, lg=None, vm=None):
        parts = []
        if vm is not None:
            n = self.q.need_vm(vm)
            if n is not None: parts.append('vmcnt(%d)' % n)
        if lg is not None:
            n = self.q.need_lg(lg)
            if n is not None: parts.append('lgkmcnt(%d)' % n)
        if parts: self.a('s_waitcnt ' + ' '.join(parts)); return True
        return False
    def wait_all_lg(self):
        self.q.lg = []; self.a('s_waitcnt lgkmcnt(0)')
    def ds(self, text, tag, srctag=None):
        self.a(text, srctag=srctag); self.q.ds(tag)
    def dma(self, voff, srd, soff, imm, tag, nt=None, cap=None):
        nt = self.nt if nt is None else nt
        if cap is not None and len(self.q.vm) > cap:
            self.a('s_waitcnt vmcnt(%d)' % cap); self.q.vm = self.q.vm[len(self.q.vm) - cap:] if cap else []
        o = (' offset:%d' % imm) if imm else ''
        self.a('buffer_load_dwordx4 %s, %s, %s offen%s%s lds' % (vr(voff), sr(srd, 4), soff, o, nt), tag=tag)
        self.q.vmem(tag)
    def mark(self):
        if not self.prof: return
        a = self.a
        a('s_memrealtime s[80:81]'); a('s_memtime s[82:83]'); a('s_waitcnt lgkmcnt(0)'); self.q.lg = []
        a('v_mov_b32 %s, s80' % vr(vPS0)); a('v_mov_b32 %s, s82' % vr(vPS1))
        a('s_mov_b32 %s, 0x4000000' % sr(sO + 2))
        a('v_mov_b32 %s, 0' % vr(vPZ))
        a('buffer_store_dwordx2 v[%d:%d], %s, %s, s84 offen' % (vPS0, vPS1, vr(vPZ), sr(sO, 4)))
        a('s_mov_b32 %s, %d' % (sr(sO + 2), OFRAG_BYTES))
        a('s_add_u32 s84, s84, 8')
    def prof_init(self):
        if not self.prof: return
        a = self.a
        a('s_lshl_b32 s84, s2, 2'); a('s_add_u32 s84, s84, %s' % sr(sWV)); a('s_lshl_b32 s84, s84, 9'); a('s_add_u32 s84, s84, 0x2000000')

    def entry(self):
        a = self.a
        a('s_cmp_ge_u32 s2, %d' % self.ngrid)
        a('s_cbranch_scc1 L_%s_end' % self.name)
        a('s_load_dwordx16 %s, s[0:1], 0' % sr(sKA, 16))
        a('s_load_dwordx4 %s, s[0:1], 64' % sr(sKA + 16, 4))
        a('s_load_dwordx2 %s, s[0:1], 96' % sr(sPAIR, 2))
        a('v_lshrrev_b32 v1, 6, v0')
        a('v_and_b32 %s, 63, v0' % vr(vLANE))
        a('v_readfirstlane_b32 %s, v1' % sr(sWV))
        a('s_lshr_b32 %s, s2, 2' % sr(sBR)); a('s_and_b32 %s, %s, 1' % (sr(sBR), sr(sBR)))
        a('s_and_b32 %s, s2, 3' % sr(sT0)); a('s_lshl_b32 %s, %s, 3' % (sr(sT0), sr(sT0)))
        a('s_lshr_b32 %s, s2, 3' % sr(sT1)); a('s_and_b32 %s, %s, 7' % (sr(sT2), sr(sT1)))
        a('s_add_u32 %s, %s, %s' % (sr(sH), sr(sT0), sr(sT2)))
        a('s_lshr_b32 %s, %s, 3' % (sr(sBP), sr(sT1)))
        a('s_lshr_b32 %s, %s, 1' % (sr(sKH), sr(sWV))); a('s_and_b32 %s, %s, 1' % (sr(sQH), sr(sWV)))
        a('s_waitcnt lgkmcnt(0)')
        a('s_cmp_eq_u32 %s, 0' % sr(sBR))
        for dst, pa, pb in ((sX, 56, 66), (sK, 58, 68), (sV, 60, 70), (sW, 62, 72)):
            a('s_cselect_b32 %s, %s, %s' % (sr(dst), sr(pa), sr(pb)))
            a('s_cselect_b32 %s, %s, %s' % (sr(dst + 1), sr(pa + 1), sr(pb + 1)))
        a('s_lshl_b32 %s, %s, 5' % (sr(sT0), sr(sBP))); a('s_add_u32 %s, %s, %s' % (sr(sT0), sr(sT0), sr(sH)))
        a('s_lshr_b32 %s, %s, 14' % (sr(sT1), sr(sT0)))
        a('s_lshl_b32 %s, %s, 18' % (sr(sT0), sr(sT0)))
        for s in (sK, sV):
            a('s_add_u32 %s, %s, %s' % (sr(s), sr(s), sr(sT0))); a('s_addc_u32 %s, %s, %s' % (sr(s + 1), sr(s + 1), sr(sT1)))
            a('s_mov_b32 %s, 0x2040000' % sr(s + 2)); a('s_mov_b32 %s, 0x20000' % sr(s + 3))
        a('s_mul_i32 %s, %s, 184320' % (sr(sT0), sr(sBP)))
        a('s_add_u32 %s, %s, %s' % (sr(sX), sr(sX), sr(sT0))); a('s_addc_u32 %s, %s, 0' % (sr(sX + 1), sr(sX + 1)))
        a('s_mov_b32 %s, 921600' % sr(sX + 2)); a('s_mov_b32 %s, 0x20000' % sr(sX + 3))
        a('s_lshl_b32 %s, %s, 8' % (sr(sT0), sr(sH)))
        a('s_add_u32 %s, %s, %s' % (sr(sW), sr(sW), sr(sT0))); a('s_addc_u32 %s, %s, 0' % (sr(sW + 1), sr(sW + 1)))
        a('s_mov_b32 %s, %d' % (sr(sW + 2), 575 * 8192 + 256)); a('s_mov_b32 %s, 0x20000' % sr(sW + 3))
        a('s_mov_b32 %s, %s' % (sr(sO), sr(sPAIR))); a('s_mov_b32 %s, %s' % (sr(sO + 1), sr(sPAIR + 1)))
        a('s_mov_b32 %s, %d' % (sr(sO + 2), OFRAG_BYTES)); a('s_mov_b32 %s, 0x20000' % sr(sO + 3))
        a('s_lshl_b32 %s, %s, 3' % (sr(sT0), sr(sBR))); a('s_add_u32 %s, %s, %s' % (sr(sT0), sr(sT0), sr(sBP)))
        a('s_mul_i32 %s, %s, 10' % (sr(sT0), sr(sT0))); a('s_mul_i32 %s, %s, 5' % (sr(sT1), sr(sQH))); a('s_add_u32 %s, %s, %s' % (sr(sT0), sr(sT0), sr(sT1)))
        a('s_lshl_b32 %s, %s, 17' % (sr(sT0), sr(sT0)))
        a('s_lshl_b32 %s, %s, 12' % (sr(sT1), sr(sH))); a('s_add_u32 %s, %s, %s' % (sr(sT0), sr(sT0), sr(sT1)))
        a('s_lshl_b32 %s, %s, 11' % (sr(sT1), sr(sKH))); a('s_add_u32 %s, %s, %s' % (sr(sOBASE), sr(sT0), sr(sT1)))
        a('s_mul_i32 %s, %s, %d' % (sr(sKB), sr(sKH), PAIR)); a('s_add_u32 %s, %s, %d' % (sr(sVB), sr(sKB), VOFF))
        a('s_lshl_b32 %s, %s, 12' % (sr(sT0), sr(sQH)))
        a('s_add_u32 %s, %s, %s' % (sr(sKD), sr(sKB), sr(sT0))); a('s_add_u32 %s, %s, %s' % (sr(sVD), sr(sVB), sr(sT0)))
        a('s_lshl_b32 %s, %s, 13' % (sr(sWOFF), sr(sKH))); a('s_add_u32 %s, %s, %s' % (sr(sWOFF), sr(sWOFF), sr(sT0)))
        a('s_mov_b32 %s, 0' % sr(sA)); a('s_mov_b32 %s, 8192' % sr(sB)); a('s_mov_b32 %s, 16384' % sr(sC))
        a('s_lshr_b32 %s, s2, 3' % sr(sROT)); a('s_lshl_b32 %s, %s, 1' % (sr(sROT), sr(sROT))); a('s_and_b32 %s, %s, %d' % (sr(sROT), sr(sROT), 15 if self.opts.get('rot', 1) else 0))
        a('s_lshr_b32 %s, s2, 3' % sr(sT0)); a('s_and_b32 %s, %s, 7' % (sr(sT1), sr(sT0)))
        a('s_lshl_b32 %s, %s, 1' % (sr(sT2), sr(sBP))); a('s_add_u32 %s, %s, %s' % (sr(sCC), sr(sT1), sr(sT2)))
        a('s_cmp_ge_u32 %s, 9' % sr(sCC)); a('s_cselect_b32 %s, 9, 0' % sr(sT0)); a('s_sub_u32 %s, %s, %s' % (sr(sCC), sr(sCC), sr(sT0)))
        a('s_mov_b32 %s, 0x%x' % (sr(sCS), CSCALE))
        L = vr(vLANE)
        a('v_lshrrev_b32 v1, 4, %s' % L); a('v_and_b32 v2, 15, %s' % L)
        a('v_xor_b32 v3, v1, v2'); a('v_lshlrev_b32 v3, 4, v3'); a('v_lshl_add_u32 %s, v1, 8, v3' % vr(vOFK))
        for i in range(1, 4): a('v_xor_b32 %s, %d, %s' % (vr(vOFK + i), 64 * i, vr(vOFK)))
        a('v_lshlrev_b32 v3, 1, v1'); a('v_xor_b32 v3, v3, v2'); a('v_lshlrev_b32 v3, 4, v3')
        a('v_lshl_add_u32 %s, v1, 8, v3' % vr(vOFV)); a('v_xor_b32 %s, 128, %s' % (vr(vOFV + 1), vr(vOFV)))
        a('v_lshlrev_b32 v3, 2, v1'); a('v_xor_b32 v3, v3, v2'); a('v_lshlrev_b32 v3, 4, v3')
        a('v_lshl_add_u32 %s, v1, 13, v3' % vr(vOFW))
        a('v_lshrrev_b32 v4, 3, %s' % L); a('v_and_b32 v5, 7, %s' % L); a('v_xor_b32 v5, v5, v1'); a('v_lshlrev_b32 v5, 4, v5')
        a('s_lshl_b32 %s, %s, 6' % (sr(sT0), sr(sQH)))
        a('v_xor_b32 v5, %s, v5' % sr(sT0))
        a('v_mul_u32_u24 v4, 1152, v4'); a('v_add_u32 %s, v4, v5' % vr(vOFX)); a('v_xor_b32 %s, 64, %s' % (vr(vOFX2), vr(vOFX)))
        a('v_lshrrev_b32 v6, 1, v2'); a('v_xor_b32 v6, v6, v1'); a('v_lshlrev_b32 v6, 4, v6')
        a('v_lshl_add_u32 v6, v2, 7, v6'); a('v_add_u32 %s, %d, v6' % (vr(vAX), SCR)); a('v_xor_b32 %s, 64, %s' % (vr(vAX + 1), vr(vAX)))
        a('v_xor_b32 v6, v1, v2'); a('v_lshlrev_b32 v6, 4, v6'); a('v_lshl_add_u32 %s, v2, 8, v6' % vr(vAK))
        a('v_lshrrev_b32 v6, 2, v2'); a('v_and_b32 v7, 3, v2')
        a('v_lshl_add_u32 v8, v1, 2, v6')
        a('v_and_b32 v9, 7, v8')
        a('s_lshl_b32 %s, %s, 2' % (sr(sT0), sr(sKH))); a('v_xor_b32 v9, %s, v9' % sr(sT0))
        a('v_lshlrev_b32 v8, 8, v8'); a('v_lshl_add_u32 v8, v9, 5, v8'); a('v_lshl_add_u32 %s, v7, 3, v8' % vr(vAV))
        a('v_lshl_add_u32 v8, v1, 3, v6'); a('v_lshlrev_b32 v8, 8, v8')
        a('v_xor_b32 v9, %s, v6' % sr(sWV)); a('v_lshl_add_u32 v8, v9, 6, v8'); a('v_lshl_add_u32 v8, v7, 4, v8')
        for i in range(4): a('v_add_u32 %s, %d, v8' % (vr(vAW + i), WBUF[i]))
        a('v_lshlrev_b32 v10, 4, %s' % L); a('v_add_u32 %s, %d, v10' % (vr(vAQ), QREG))
        a('s_mul_i32 %s, %s, %d' % (sr(sXW), sr(sWV), 40 * 1152))
        a('s_mov_b32 %s, 0' % sr(sTAU))

    def off_ops(self, dst, add):
        t0, t1, t2 = sr(sT0), sr(sT1), sr(sT2)
        return ['s_add_u32 %s, %s, %d' % (t2, sr(sTAU), add),
                's_add_u32 %s, %s, %s' % (t0, t2, sr(sROT)), 's_and_b32 %s, %s, 15' % (t0, t0), 's_lshl_b32 %s, %s, 14' % (t0, t0),
                's_add_u32 %s, %s, %s' % (t0, t0, sr(sWOFF)), 's_lshr_b32 %s, %s, 4' % (t1, t2)] + (['s_xor_b32 %s, %s, 1' % (t1, t1)] if self.opts.get('swap') else []) + ['s_lshl_b32 %s, %s, 25' % (t1, t1),
                's_add_u32 %s, %s, %s' % (t0, t0, t1), 's_cmp_lt_u32 %s, 32' % t2, 's_cselect_b32 %s, %s, 0x70000000' % (sr(dst), t0)]

    def cc_of(self, c):
        r = sr(sT3)
        return ['s_add_u32 %s, %s, %d' % (r, sr(sCC), c), 's_cmp_ge_u32 %s, 9' % r, 's_cselect_b32 %s, 9, 0' % sr(sT2), 's_sub_u32 %s, %s, %s' % (r, r, sr(sT2))]
    def x_ops(self, sg):
        c, it = sg >> 1, sg & 1
        ops = []
        for k in range(5):
            pre = []
            if k == 0:
                pre += self.cc_of(c)
                pre += ['s_lshl_b32 %s, %s, 7' % (sr(sXC), sr(sT3)), 's_add_u32 %s, %s, %s' % (sr(sXC), sr(sXC), sr(sXW))]
                if it: pre.append('s_add_u32 %s, %s, 737280' % (sr(sXC), sr(sXC)))
                pre += ['s_mul_i32 %s, %s, 5120' % (sr(sT2), sr(sWV)), 's_add_u32 m0, %s, %d' % (sr(sT2), XBUF[sg % 3])]
            if k == 4: pre.append('s_add_u32 m0, m0, 4096')
            imm = (k * 1024) if k < 4 else 0
            pre.append('s_add_u32 %s, %s, %d' % (sr(sSO), sr(sXC), k * 8 * 1152 - imm))
            ops.append((pre, (vOFX if k % 2 == 0 else vOFX2, sX, sr(sSO), imm, ('XS', sg))))
        return ops
    def w_ops(self, c, half):
        ops = []
        for k in range(2):
            pre = []
            if k == 0:
                pre += self.cc_of(c)
                pre += ['s_lshl_b32 %s, %s, 19' % (sr(sWC), sr(sT3)), 's_lshl_b32 %s, %s, 16' % (sr(sT2), sr(sWV)), 's_add_u32 %s, %s, %s' % (sr(sWC), sr(sWC), sr(sT2))]
                pre += ['s_add_u32 %s, %s, %d' % (sr(sSO), sr(sWC), half * 32 * 8192)]
                pre += ['s_lshl_b32 %s, %s, 11' % (sr(sT2), sr(sWV)), 's_add_u32 m0, %s, %d' % (sr(sT2), WBUF[2 * (c & 1) + half])]
            else:
                pre.append('s_add_u32 %s, %s, %d' % (sr(sSO), sr(sSO), 32768 - 1024))
            ops.append((pre, (vOFW, sW, sr(sSO), 1024 * k, ('WS', c))))
        return ops
    def tile_piece(self, isk, m, k, slot_imm, offreg):
        base = sKD if isk else sVD
        pre = ['s_add_u32 m0, %s, %d' % (sr(base), slot_imm)]
        if isk: return (pre, (vOFK + k, sK, sr(offreg), k * 1024, ('K', m)))
        return (pre, (vOFV + (k & 1), sV, sr(offreg), k * 1024, ('V', m)))

    def phase_q(self):
        a = self.a
        def do_op(op):
            pre, d = op
            for p in pre: a(p)
            a('s_nop 0') if pre and 'm0' in pre[-1] else None
            pol = self.nt
            if d[4][0] in ('XS', 'WS') and 'xpol' in self.opts: pol = (' ' + self.opts['xpol']) if self.opts['xpol'] else ''
            self.dma(*d, nt=pol)
        self.do_op = do_op
        for p in self.off_ops(sOFFK, 0): a(p)
        for p in self.off_ops(sOFFV, 1): a(p)
        prefill = [self.tile_piece(True, 0, k, 0, sOFFK) for k in range(4)] + [self.tile_piece(False, 0, k, 0, sOFFK) for k in range(4)] + \
                  [self.tile_piece(True, 1, k, 8192, sOFFV) for k in range(4)] + [self.tile_piece(False, 1, k, 8192, sOFFV) for k in range(4)]
        for op in self.w_ops(0, 0) + self.x_ops(0) + self.w_ops(0, 1) + self.x_ops(1) + self.w_ops(1, 0) + self.w_ops(1, 1): do_op(op)
        NM = 720; LAB = 4
        def info(m):
            sg = m // 40; r = m % 40; return sg, sg >> 1, sg & 1, r // 20, (r % 20) // 2, r % 2
        def acc(it, jq, u): return vACC + (80 if it == 0 else 0) + 8 * jq + 4 * u
        self.acc = acc
        def bread(bi):
            sg, c, it, ks, jq, u = info(2 * bi)
            imm = (sg % 3) * 20480 + jq * 2048
            self.ds('ds_read_b128 %s, %s offset:%d' % (vr(vBB + 4 * (bi % 8), 4), vr(vAX + ks), imm), ('B', bi), srctag=('XS', sg))
        def aread(c, ks, u):
            for z in range(2):
                self.ds('ds_read_b64_tr_b16 %s, %s offset:%d' % (vr(vAB + 4 * (ks * 2 + u) + 2 * z, 2), vr(vAW + 2 * (c & 1) + ks), 4 * z * 256 + 8 * u), ('A', c, ks, u), srctag=('WS', c))
        issue = {}
        def add(g, item): issue.setdefault(g, []).append(item)
        bar_at = {}
        LA = 7
        for sg in range(18):
            m0 = 40 * sg; c = sg >> 1
            gbar = m0 - 2 * LA + 6 if sg > 0 else -1
            bar_at[gbar] = sg
            for bi in range(m0 // 2, m0 // 2 + 20):
                g = 2 * (bi - LA)
                if g < gbar: g = gbar + (bi - m0 // 2) if sg > 0 else gbar
                add(g, ('B', bi))
            if sg % 2 == 0:
                for ks in range(2):
                    for u in range(2):
                        last = m0 - 40 + 20 * ks + 18 + u
                        ga = max(gbar, last) if sg > 0 else gbar
                        add(ga, ('A', c, ks, u))
        pend = []
        for g in range(-1, NM):
            if g >= 0:
                sg, c, it, ks, jq, u = info(g)
                self.wait(lg=[('B', g // 2), ('A', c, ks, u)])
                first = (c == 0 and ks == 0)
                cc = '0' if first else vr(acc(it, jq, u), 4)
                a('%s %s, %s, %s, %s' % (MF, vr(acc(it, jq, u), 4), vr(vAB + 4 * (ks * 2 + u), 4), vr(vBB + 4 * ((g // 2) % 8), 4), cc))
            if g in bar_at:
                sg = bar_at[g]
                self.wait(vm=[('XS', sg)] + ([('WS', sg >> 1)] if sg % 2 == 0 else []))
                self.wait_all_lg()
                a('s_barrier')
                if self.opts.get('qmarks') and sg % 2 == 0: self.mark()
                if sg + 2 < 18: pend += self.x_ops(sg + 2)
                if sg % 2 == 1 and (sg >> 1) + 2 < 9: pend += self.w_ops((sg >> 1) + 2, 0)
                if sg % 2 == 0 and sg >= 2 and (sg >> 1) + 1 < 9: pend += self.w_ops((sg >> 1) + 1, 1)
                if sg >= 1 and prefill and not self.opts.get('noprefill'): pend.append(prefill.pop(0))
            for it_ in issue.get(g, []):
                if it_[0] == 'B': bread(it_[1])
                else: aread(it_[1], it_[2], it_[3])
            if pend and (g % self.opts.get('qdmagap', 4) == 1 or g < 0) and g not in bar_at:
                do_op(pend.pop(0))
        while pend: do_op(pend.pop(0))
        while prefill: do_op(prefill.pop(0))
        self.wait_all_lg()
        a('s_barrier')
        for p in self.off_ops(sOFFK, 2): a(p)
        for k in range(4): do_op(self.tile_piece(True, 2, k, 16384, sOFFK))
        a('s_nop 7')
        a('v_mov_b32 %s, %s' % (vr(vM2), sr(sCS))); a('v_mov_b32 %s, %s' % (vr(vM3), sr(sCS)))
        a('s_lshl_b32 %s, %s, 10' % (sr(sT0), sr(sWV)))
        a('v_add_u32 %s, %s, %s' % (vr(vM4), sr(sT0), vr(vAQ)))
        for jq in range(10):
            b = acc(0, jq, 0)
            for r in range(0, 8, 2): a('v_pk_mul_f32 %s, %s, %s' % (vr(b + r, 2), vr(b + r, 2), vr(vM2, 2)))
            for r in range(4): a('v_cvt_pk_bf16_f32 %s, %s, %s' % (vr(b + r), vr(b + 2 * r), vr(b + 2 * r + 1)))
            self.ds('ds_write_b128 %s, %s offset:%d' % (vr(vM4), vr(b, 4), jq * 4096), ('QW',))
        for jq in range(10):
            b = acc(1, jq, 0)
            for r in range(0, 8, 2): a('v_pk_mul_f32 %s, %s, %s' % (vr(b + r, 2), vr(b + r, 2), vr(vM2, 2)))
        self.wait_all_lg()
        for jq in range(10):
            b = acc(1, jq, 0)
            for r in range(4): a('v_cvt_pk_bf16_f32 %s, %s, %s' % (vr(vQ2 + 4 * jq + r), vr(b + 2 * r), vr(b + 2 * r + 1)))
        a('s_barrier')
        self.wait(vm=[('K', 0)])
        self.wait(vm=[('V', 0), ('K', 1), ('V', 1)])
        a('s_barrier')
        self.kread_all(sA, 0)
        a('s_barrier')

    def q_load(self):
        a = self.a
        a('s_mul_i32 %s, %s, %d' % (sr(sT0), sr(sQH), 5 * 4096))
        a('v_add_u32 %s, %s, %s' % (vr(vM4), sr(sT0), vr(vAQ)))
        for j in range(5):
            for s in range(4):
                self.ds('ds_read_b128 %s, %s offset:%d' % (ar(aQ(j, s), 4), vr(vM4), (j * 4 + s) * 1024), ('QF',))
        self.wait_all_lg()

    def kread_all(self, slot, m):
        a = self.a
        a('s_add_u32 %s, %s, %s' % (sr(sT0), sr(sKB), sr(slot)))
        a('v_add_u32 %s, %s, %s' % (vr(vT), sr(sT0), vr(vAK)))
        for s in range(1, 4): a('v_xor_b32 %s, %d, %s' % (vr(vT + s), 64 * s, vr(vT)))
        for kk in range(2):
            for s in range(4):
                self.ds('ds_read_b128 %s, %s offset:%d' % (vr(vKF + 4 * (kk * 4 + s), 4), vr(vT + s), kk * 4096), ('KF', kk, s), srctag=('K', m))
        self.wait_all_lg()

    def period(self, n, j, doA=True, doB=True, doC=True, first_step=False, first_body=False, prime=False, tg=None):
        a = self.a
        u = 5 * n + j
        jA = (j + 1) % 5
        jC = (j - 1) % 5; nC = n - (1 if j == 0 else 0)
        SA = vS[(u + 1) & 1]; SB = vS[u & 1]; PB = vP[u & 1]; PC = vP[(u - 1) & 1]
        zeroC = first_body and nC == 0
        kreload = doA and (j == 3) and not prime
        vreload = (j == 0) and not prime
        cap = self.opts.get('maxfl')
        valu = []
        if doB:
            order = []
            for r in range(8):
                order.append(('E', r))
                if r >= 1: order.append(('V', r - 1))
                if r >= 2 and r % 2 == 0: order.append(('C', r // 2 - 1))
            order += [('V', 7), ('C', 3)]
            for kind, r in order:
                if kind == 'E': valu.append((2, 'v_exp_f32 %s, %s' % (vr(SB + r), vr(SB + r))))
                elif kind == 'V':
                    if first_step and r == 0: valu.append((1, 'v_mov_b32 %s, %s' % (vr(vL + j), vr(SB + r))))
                    else: valu.append((1, 'v_add_f32 %s, %s, %s' % (vr(vL + j), vr(vL + j), vr(SB + r))))
                else: valu.append((1, 'v_cvt_pk_bf16_f32 %s, %s, %s' % (vr(PB + r), vr(SB + 2 * r), vr(SB + 2 * r + 1))))
        dmas = []
        if not prime:
            def kp(k):
                pre = ['s_add_u32 m0, %s, %s' % (sr(sKD), sr(sA))] if k in (0, 2) else []
                return (pre, (vOFK + k, sK, sr(sOFFK), k * 1024, ('K', tg + 3)))
            def vp(k):
                pre = ['s_add_u32 m0, %s, %s' % (sr(sVD), sr(sC))] if k in (0, 2) else []
                return (pre, (vOFV + (k & 1), sV, sr(sOFFV), k * 1024, ('V', tg + 2)))
            plan = self.opts.get('dmaplan', 0)
            if j == 0: dmas = [vp(0), vp(1)]
            if j == 1: dmas = [vp(2), vp(3)]
            if j == 2: dmas = [kp(0), kp(1)]
            if j == 4: dmas = [kp(2), kp(3)]
        dma_gaps = [3, 11] if dmas else []
        if j == 0: dma_gaps = [2, 10]
        addr_ops = {}
        if kreload:
            addr_ops[-1] = ['s_add_u32 %s, %s, %s' % (sr(sT0), sr(sKB), sr(sB)), 'v_add_u32 %s, %s, %s' % (vr(vT), sr(sT0), vr(vAK))] + \
                           ['v_xor_b32 %s, %d, %s' % (vr(vT + s), 64 * s, vr(vT)) for s in range(1, 4)]
        if vreload:
            addr_ops[-1] = ['s_add_u32 %s, %s, %s' % (sr(sT0), sr(sVB), sr(sA)), 'v_add_u32 %s, %s, %s' % (vr(vT), sr(sT0), vr(vAV))] + \
                           ['v_xor_b32 %s, %d, %s' % (vr(vT + k), 32 * k, vr(vT)) for k in range(1, 8)]
        for p in addr_ops.get(-1, []): a(p)
        nslots = sum(c for c, _ in valu)
        vi = 0; used = 0
        for g in range(16):
            isA = (g % 2 == 0); s8 = g // 2
            ds_ops = []
            if isA:
                kk = s8 >> 2; s = s8 & 3
                if doA:
                    self.wait(lg=[('KF', kk, s)])
                    d = SA + 4 * kk
                    c = '0' if s == 0 else vr(d, 4)
                    a('%s %s, %s, %s, %s' % (MF, vr(d, 4), vr(vKF + 4 * (kk * 4 + s), 4), ar(aQ(jA, s), 4), c))
                    if kreload:
                        ds_ops.append(('ds_read_b128 %s, %s offset:%d' % (vr(vKF + 4 * (kk * 4 + s), 4), vr(vT + s), kk * 4096), ('KF', kk, s), ('K', tg + 1)))
            else:
                dt = s8
                vf = vVF + 4 * dt
                if doC:
                    self.wait(lg=[('VF', dt)])
                    o = ar(aO(jC, dt), 4)
                    c = '0' if zeroC else o
                    a('%s %s, %s, %s, %s' % (MF, o, vr(vf, 4), vr(PC, 4), c))
                if vreload:
                    for z in range(2):
                        ds_ops.append(('ds_read_b64_tr_b16 %s, %s offset:%d' % (vr(vf + 2 * z, 2), vr(vT + dt), z * 4096), ('VF', dt), ('V', tg)))
            nds = 0
            if g in dma_gaps and dmas:
                pre, d = dmas.pop(0)
                for p in pre: a(p)
                if pre: a('s_nop 0')
                self.dma(*d, cap=cap)
                nds += 1
            for txt, tag, st in ds_ops:
                self.ds(txt, tag, st); nds += 1
            if j == 4 and g == 7 and not prime:
                self.wait(vm=[('K', tg + 2), ('V', tg + 1)], lg=[('KF', kk_, s_) for kk_ in range(2) for s_ in range(4)] + [('VF', d_) for d_ in range(8)])
                a('s_barrier')
            budget = 2 - nds
            target = (nslots * g + 14) // 15
            while vi < len(valu) and (used < target) and (budget > 0 or g >= 15 or used + 2 < target):
                a(valu[vi][1]); budget -= valu[vi][0]; used += valu[vi][0]; vi += 1
        assert vi == len(valu) and not dmas
        if j == 4 and not prime:
            a('s_add_u32 %s, %s, 1' % (sr(sTAU), sr(sTAU)))
            for p in self.off_ops(sOFFK, 3): a(p)
            for p in self.off_ops(sOFFV, 2): a(p)
            a('s_mov_b32 %s, %s' % (sr(sT3), sr(sA))); a('s_mov_b32 %s, %s' % (sr(sA), sr(sB))); a('s_mov_b32 %s, %s' % (sr(sB), sr(sC))); a('s_mov_b32 %s, %s' % (sr(sC), sr(sT3)))

    def body(self, first, tg0):
        for nn in range(2):
            for j in range(5):
                self.period(nn, j, doC=not (first and nn == 0 and j == 0), first_step=(first and nn == 0), first_body=first, tg=tg0 + nn)

    def item_prologue(self):
        self.q_load()
        self.period(-1, 4, doA=True, doB=False, doC=False, prime=True, tg=-1)

    def tail_c(self):
        a = self.a
        a('s_nop 1')
        for dt in range(8):
            o = ar(aO(4, dt), 4)
            a('%s %s, %s, %s, %s' % (MF, o, vr(vVF + 4 * dt, 4), vr(vP[1], 4), o))

    def epilogue(self):
        a = self.a
        self.wait_all_lg()
        T = vS[0]
        for j in range(5): a('v_mov_b32 %s, %s' % (vr(T + j), vr(vL + j)))
        a('s_nop 1')
        for j in range(5): a('v_permlane32_swap_b32 %s, %s' % (vr(vL + j), vr(T + j)))
        a('s_nop 1')
        for j in range(5): a('v_add_f32 %s, %s, %s' % (vr(vL + j), vr(vL + j), vr(T + j)))
        for j in range(5): a('v_mov_b32 %s, %s' % (vr(T + j), vr(vL + j)))
        a('s_nop 1')
        for j in range(5): a('v_permlane16_swap_b32 %s, %s' % (vr(vL + j), vr(T + j)))
        a('s_nop 1')
        for j in range(5): a('v_add_f32 %s, %s, %s' % (vr(vL + j), vr(vL + j), vr(T + j)))
        a('v_subrev_u32 %s, %d, %s' % (vr(vM0), QREG, vr(vAQ)))
        a('v_lshrrev_b32 %s, 2, %s' % (vr(vM1), vr(vM0)))
        a('s_mul_i32 %s, %s, 1280' % (sr(sT0), sr(sWV))); a('s_add_u32 %s, %s, %d' % (sr(sT0), sr(sT0), LAREA))
        a('v_add_u32 %s, %s, %s' % (vr(vM2), sr(sT0), vr(vM1)))
        a('s_xor_b32 %s, %s, 2' % (sr(sT1), sr(sWV))); a('s_mul_i32 %s, %s, 1280' % (sr(sT0), sr(sT1))); a('s_add_u32 %s, %s, %d' % (sr(sT0), sr(sT0), LAREA))
        a('v_add_u32 %s, %s, %s' % (vr(vM3), sr(sT0), vr(vM1)))
        for j in range(5): self.ds('ds_write_b32 %s, %s offset:%d' % (vr(vM2), vr(vL + j), j * 256), ('LW',))
        a('s_lshl_b32 %s, %s, 12' % (sr(sT0), sr(sWV))); a('v_add_u32 %s, %s, %s' % (vr(vT), sr(sT0), vr(vAQ)))
        a('s_lshl_b32 %s, %s, 12' % (sr(sT0), sr(sT1))); a('v_add_u32 %s, %s, %s' % (vr(vT + 1), sr(sT0), vr(vAQ)))
        a('s_mul_i32 %s, %s, %d' % (sr(sT1), sr(sITEM), 4 * 10 * 32 * 4 * 1024)); a('s_add_u32 %s, %s, %s' % (sr(sOITEM), sr(sOBASE), sr(sT1)))
        def writes(j):
            for i in range(4):
                self.ds('ds_write_b128 %s, %s offset:%d' % (vr(vT), ar(aO(j, 4 + i), 4), (j & 1) * 16384 + i * 1024), ('RW',))
        a('s_nop 3')
        writes(0)
        self.wait_all_lg(); a('s_barrier')
        for j in range(5): self.ds('ds_read_b32 %s, %s offset:%d' % (vr(T + j), vr(vM3), j * 256), ('LR',))
        self.wait_all_lg()
        for j in range(5): a('v_add_f32 %s, %s, %s' % (vr(vL + j), vr(vL + j), vr(T + j)))
        for j in range(5): a('v_rcp_f32 %s, %s' % (vr(vL + j), vr(vL + j)))
        R = vR; OWN = vR + 16; PK = vR + 32
        for j in range(5):
            for i in range(4):
                self.ds('ds_read_b128 %s, %s offset:%d' % (vr(R + 4 * i, 4), vr(vT + 1), (j & 1) * 16384 + i * 1024), ('RR', j))
            if j < 4: writes(j + 1)
            for r in range(16): a('v_accvgpr_read_b32 %s, %s' % (vr(OWN + r), ar(aO(j, 0) + r)))
            self.wait(lg=[('RR', j)])
            for r in range(0, 16, 2): a('v_pk_add_f32 %s, %s, %s' % (vr(R + r, 2), vr(R + r, 2), vr(OWN + r, 2)))
            for r in range(16): a('v_mul_f32 %s, %s, %s' % (vr(R + r), vr(R + r), vr(vL + j)))
            pk = PK + 8 * (j & 1)
            for r in range(8): a('v_cvt_pk_bf16_f32 %s, %s, %s' % (vr(pk + r), vr(R + 2 * r), vr(R + 2 * r + 1)))
            a('s_add_u32 %s, %s, %d' % (sr(sSO), sr(sOITEM), j * 32 * 4 * 1024))
            for f in range(2):
                if self.ostore == 'none': continue
                a('buffer_store_dwordx4 %s, %s, %s, %s offen offset:%d%s' % (vr(pk + 4 * f, 4), vr(vM0), sr(sO, 4), sr(sSO), f * 1024, (' ' + self.ostore) if self.ostore else ''), tag=('OS',))
                self.q.vmem(('OS',))
            self.wait_all_lg(); a('s_barrier')

    def item_switch(self):
        a = self.a
        a('s_lshl_b32 %s, %s, 10' % (sr(sT0), sr(sWV)))
        a('v_add_u32 %s, %s, %s' % (vr(vM4), sr(sT0), vr(vAQ)))
        for jq in range(10):
            self.ds('ds_write_b128 %s, %s offset:%d' % (vr(vM4), vr(vQ2 + 4 * jq, 4), jq * 4096), ('QW',))
        self.wait_all_lg(); a('s_barrier')

    def build(self):
        a = self.a; n = self.name
        marks = {}
        self.entry()
        self.prof_init()
        self.mark()
        self.phase_q()
        a('s_mov_b32 %s, 0' % sr(sITEM))
        for p in self.off_ops(sOFFK, 3): a(p)
        for p in self.off_ops(sOFFV, 2): a(p)
        self.mark()
        marks['item'] = len(a.ins)
        a('L_%s_item:' % n)
        self.item_prologue()
        self.body(True, 0)
        a('s_mov_b32 %s, 7' % sr(sLOOP))
        save = self.a; self.a = Asm(hist=save.ins); self.body(False, 2); self.a = save
        marks['loop'] = len(a.ins)
        a('L_%s_loop:' % n)
        self.body(False, 4)
        if self.prof:
            a('s_and_b32 s85, %s, 1' % sr(sLOOP)); a('s_cmp_eq_u32 s85, 1'); a('s_cbranch_scc0 L_%s_nomark' % n)
            self.mark()
            a('L_%s_nomark:' % n)
        a('s_sub_u32 %s, %s, 1' % (sr(sLOOP), sr(sLOOP))); a('s_cmp_lg_u32 %s, 0' % sr(sLOOP)); a('s_cbranch_scc1 L_%s_loop' % n)
        marks['tail'] = len(a.ins)
        self.tail_c()
        self.mark()
        self.epilogue()
        self.mark()
        a('s_cmp_eq_u32 %s, 1' % sr(sITEM)); a('s_cbranch_scc1 L_%s_end' % n)
        marks['switch'] = len(a.ins)
        self.item_switch()
        a('s_mov_b32 %s, 1' % sr(sITEM))
        a('s_branch L_%s_item' % n)
        marks['end'] = len(a.ins)
        a('L_%s_end:' % n)
        a('s_endpgm')
        self.marks = marks
        return self.a
    def runtime_seq(self):
        I = self.a.ins; m = self.marks
        pre = I[:m['item']]; pro = I[m['item']:m['loop']]; lp = I[m['loop']:m['tail']]; tl = I[m['tail']:m['switch']]; sw = I[m['switch']:m['end']]
        seq = list(pre)
        for item in range(2):
            o = 16 * item
            seq += retag(pro, o)
            for k in range(7): seq += retag(lp, o + 2 * (k + 1) - 4)
            seq += retag(tl, o)
            if item == 0: seq += sw
        return seq

def retag(seq, off):
    out = []
    def sh(t):
        if isinstance(t, tuple) and len(t) == 2 and t[0] in ('K', 'V'): return (t[0], t[1] + off)
        return t
    for i in seq:
        if i.tag is not None or i.srctag is not None: out.append(Inst(i.text, sh(i.tag), sh(i.srctag)))
        else: out.append(i)
    return out

if __name__ == '__main__':
    g = GenG(); asm = g.build()
    print(asm.count(), 'instructions', 'mfma', asm.count('mfma'), 'autofix nops', asm.nfix)
    seq = g.runtime_seq()
    pr = check_hazards(seq, 'G'); print(len(pr), 'hazard problems'); print('\n'.join(pr[:20]))
    pr = check_waits(seq, 'G'); print(len(pr), 'wait problems'); print('\n'.join(pr[:20]))
    open('g_dump.s', 'w').write(asm.text())
```

```python
import sys, os
sys.path.insert(0, os.path.dirname(os.path.abspath(__file__)))
import gen_g, gen_b
from asmlib import check_hazards, check_waits
MAIN = 'concat_heads__mha_block_cached__gqa_block_cached__near_ridge_kernel'
HEADER = """; Kernarg layout for this problem (104 bytes, ptrs only, base s[0:1]):
"""
def kblock(name, text, vgpr, accum, sgpr=102):
    return f""".text
.globl {name}
.p2align 8
.type {name},@function
{name}:
{text}
.section .rodata,"a"
.p2align 6
.amdhsa_kernel {name}
  .amdhsa_next_free_vgpr {vgpr}
  .amdhsa_next_free_sgpr {sgpr}
  .amdhsa_accum_offset {accum}
  .amdhsa_group_segment_fixed_size 0
  .amdhsa_kernarg_size 104
  .amdhsa_user_sgpr_count 2
  .amdhsa_user_sgpr_kernarg_segment_ptr 1
  .amdhsa_system_sgpr_workgroup_id_x 1
.end_amdhsa_kernel
"""
def build(opts_g=None, ostore='sc1 nt', opts_b=None, prof=False, check=True):
    opts_g = opts_g if opts_g is not None else {'maxfl': 5, 'xpol': ''}
    g = gen_g.GenG(name='attn', prof=prof, ostore=ostore, opts=opts_g); ga = g.build()
    b = gen_b.GenB(name='outproj', opts=opts_b); ba = b.build()
    c = gen_b.GenC(name='reduce'); ca = c.build()
    if check:
        pr = check_hazards(g.runtime_seq(), 'G') + check_waits(g.runtime_seq(), 'G') + check_hazards(ba.ins, 'B') + check_waits(ba.ins, 'B') + check_hazards(ca.ins, 'C') + check_waits(ca.ins, 'C')
        assert not pr, pr[:10]
    launches = [(MAIN, 256, 163840, ga, 512, 256), ('outproj_kernel', 240, gen_b.B_LDS, ba, 216, 216), ('reduce_kernel', 720, 0, ca, 48, 48)]
    s = HEADER
    for name, grid, lds, _, _, _ in launches:
        s += '; @launch kernel=%s grid=(%d,1,1) block=(256,1,1) lds=%d\n' % (name, grid, lds)
    s += '.amdgcn_target "amdgcn-amd-amdhsa--gfx950"\n'
    for name, grid, lds, asm, vg, ac in launches:
        s += kblock(name, asm.text(), vg, ac)
    return s, launches
if __name__ == '__main__':
    s, _ = build()
    out = sys.argv[1] if len(sys.argv) > 1 else 'concat_heads__mha_block_cached__gqa_block_cached__near_ridge.s'
    open(out, 'w').write(s)
    print('wrote', out, len(s), 'bytes')
```

```python
from asmlib import *
import gen_g
from gen_g import *

FLAG_OFF = 0x5000000
PART_OFF = 0x2000000
PART_TASK = 96 * 1024
STG = 24576
NB = 4
OUT_BYTES = 8 * 160 * 1152 * 2
SPIN_MAX = 1 << 16

sWO = 86
sWS = 88
sOUT = 90
sDBG = 92
sFL = 94
tWo, tOf, tP, tF = 4, 8, 12, 16
tOut = 20
tKS, tRG, tNG, tROT = 25, 26, 27, 28
tWB, tOB, tM0, tSO, tSO2, tST, tPB, tI = 29, 30, 31, 32, 39, 40, 41, 42
tT0, tT1, tT2, tT3 = 33, 34, 35, 36
tCNT = 43

class GenF(GenG):
    def mark(self):
        if not self.prof: return
        a = self.a
        a('s_memrealtime s[80:81]'); a('s_memtime s[82:83]'); a('s_waitcnt lgkmcnt(0)'); self.q.lg = []
        a('v_mov_b32 %s, s80' % vr(vPS0)); a('v_mov_b32 %s, s82' % vr(vPS1))
        a('s_add_u32 s96, %s, 0x6000000' % sr(sWS)); a('s_addc_u32 s97, %s, 0' % sr(sWS + 1)); a('s_mov_b32 s98, 0x100000'); a('s_mov_b32 s99, 0x20000')
        a('v_mov_b32 %s, 0' % vr(vPZ))
        a('buffer_store_dwordx2 v[%d:%d], %s, s[96:99], s84 offen' % (vPS0, vPS1, vr(vPZ)))
        a('s_add_u32 s84, s84, 8')
    def prof_init(self):
        if not self.prof: return
        a = self.a
        a('s_lshl_b32 s84, s2, 2'); a('s_add_u32 s84, s84, %s' % sr(sWV)); a('s_lshl_b32 s84, s84, 9')
    def entry_extra(self):
        a = self.a
        a('s_load_dwordx4 s[96:99], s[0:1], 80')
        a('s_waitcnt lgkmcnt(0)')
        a('s_mov_b32 %s, s96' % sr(sOUT)); a('s_mov_b32 %s, s97' % sr(sOUT + 1)); a('s_mov_b32 %s, s98' % sr(sDBG)); a('s_mov_b32 %s, s99' % sr(sDBG + 1))
        a('s_mov_b32 %s, %s' % (sr(sWS), sr(sPAIR))); a('s_mov_b32 %s, %s' % (sr(sWS + 1), sr(sPAIR + 1)))
        a('s_cmp_eq_u32 %s, 0' % sr(sBR))
        a('s_cselect_b32 %s, s64, s74' % sr(sWO)); a('s_cselect_b32 %s, s65, s75' % sr(sWO + 1))
        a('s_lshl_b32 %s, s2, 7' % sr(sFL))
    def flag_srd(self, base):
        a = self.a
        a('s_add_u32 %s, %s, 0x%x' % (sr(base), sr(sWS), FLAG_OFF)); a('s_addc_u32 %s, %s, 0' % (sr(base + 1), sr(sWS + 1)))
        a('s_mov_b32 %s, %d' % (sr(base + 2), 256 * 128)); a('s_mov_b32 %s, 0x20000' % sr(base + 3))
    def flag_store(self, val, srd, v0, v1, lbl):
        a = self.a
        a('s_cmp_lg_u32 %s, 0' % sr(sWV)); a('s_cbranch_scc1 %s' % lbl)
        a('v_mov_b32 %s, %d' % (vr(v0), val)); a('v_mov_b32 %s, 0' % vr(v1))
        a('s_mov_b64 exec, 1')
        a('buffer_store_dword %s, %s, %s, %s offen sc0 sc1' % (vr(v0), vr(v1), sr(srd, 4), sr(sFL)))
        a('s_mov_b64 exec, -1')
        a(lbl + ':')
    def init_flags(self):
        a = self.a; n = self.name
        self.flag_srd(sO)
        a('s_cmp_lg_u32 %s, 0' % sr(sWV)); a('s_cbranch_scc1 L_%s_noinit' % n)
        a('v_mov_b32 v20, 0'); a('v_mov_b32 v21, 0'); a('v_mov_b32 v22, 1')
        a('s_mov_b64 exec, 1')
        a('buffer_store_dword v20, v21, %s, %s offen sc0 sc1' % (sr(sO, 4), sr(sFL)))
        a('s_waitcnt vmcnt(0)')
        a('s_mov_b32 s96, %s' % sr(sDBG)); a('s_mov_b32 s97, %s' % sr(sDBG + 1)); a('s_mov_b32 s98, 256'); a('s_mov_b32 s99, 0x20000')
        a('buffer_atomic_add v22, v21, s[96:99], 0 offen sc1')
        a('s_mov_b64 exec, -1')
        a('L_%s_noinit:' % n)
        a('s_mov_b32 %s, %s' % (sr(sO), sr(sPAIR))); a('s_mov_b32 %s, %s' % (sr(sO + 1), sr(sPAIR + 1)))
        a('s_mov_b32 %s, %d' % (sr(sO + 2), OFRAG_BYTES)); a('s_mov_b32 %s, 0x20000' % sr(sO + 3))

    def poll(self, lbl, srd, vaddr, vneed, vtmp, nl, gate=False):
        a = self.a
        a('s_cmp_lg_u32 %s, 0' % sr(sWV)); a('s_cbranch_scc1 %s_done' % lbl)
        a('s_mov_b32 %s, 0' % sr(tCNT))
        a('s_mov_b64 exec, 0x%x' % ((1 << nl) - 1))
        if gate:
            a('s_mov_b32 s96, %s' % sr(sDBG)); a('s_mov_b32 s97, %s' % sr(sDBG + 1)); a('s_mov_b32 s98, 256'); a('s_mov_b32 s99, 0x20000')
            a('v_mov_b32 %s, 0' % vr(vtmp + 1))
            a('%s_gate:' % lbl)
            a('buffer_load_dword %s, %s, s[96:99], 0 offen sc0 sc1' % (vr(vtmp), vr(vtmp + 1)))
            a('s_waitcnt vmcnt(0)')
            a('v_cmp_gt_u32 vcc, 256, %s' % vr(vtmp))
            a('s_nop 4')
            a('s_cbranch_vccz %s_loop' % lbl)
            a('s_add_u32 %s, %s, 1' % (sr(tCNT), sr(tCNT))); a('s_cmp_lt_u32 %s, %d' % (sr(tCNT), SPIN_MAX)); a('s_cbranch_scc0 %s_restore' % lbl)
            a('s_sleep 2'); a('s_branch %s_gate' % lbl)
        a('%s_loop:' % lbl)
        a('buffer_load_dword %s, %s, %s, 0 offen sc0 sc1' % (vr(vtmp), vr(vaddr), sr(srd, 4)))
        a('s_waitcnt vmcnt(0)')
        a('v_cmp_lt_u32 vcc, %s, %s' % (vr(vtmp), vr(vneed)))
        a('s_nop 4')
        a('s_cbranch_vccz %s_restore' % lbl)
        a('s_add_u32 %s, %s, 1' % (sr(tCNT), sr(tCNT))); a('s_cmp_lt_u32 %s, %d' % (sr(tCNT), SPIN_MAX)); a('s_cbranch_scc0 %s_restore' % lbl)
        a('s_sleep 1'); a('s_branch %s_loop' % lbl)
        a('%s_restore:' % lbl)
        a('s_mov_b64 exec, -1')
        a('%s_done:' % lbl)

    def g_setup(self):
        a = self.a
        G = self.G = dict(vACC=0, vAF=96, vBF=128, vOFW=192, vAW=196, vL16=208, vLANE=209)
        a('s_and_b32 %s, s2, 3' % sr(tKS)); a('s_lshr_b32 %s, s2, 3' % sr(tI))
        a('s_mul_i32 %s, %s, 43' % (sr(tRG), sr(tI))); a('s_lshr_b32 %s, %s, 7' % (sr(tRG), sr(tRG)))
        a('s_mul_i32 %s, %s, 3' % (sr(tT1), sr(tRG))); a('s_sub_u32 %s, %s, %s' % (sr(tNG), sr(tI), sr(tT1)))
        a('s_mul_i32 %s, %s, 3' % (sr(tROT), sr(tRG))); a('s_mul_i32 %s, %s, 5' % (sr(tT1), sr(tNG))); a('s_add_u32 %s, %s, %s' % (sr(tROT), sr(tROT), sr(tT1)))
        a('s_and_b32 %s, %s, 15' % (sr(tROT), sr(tROT)))
        a('s_sub_u32 %s, %s, 4096' % (sr(tWo), sr(sWO))); a('s_subb_u32 %s, %s, 0' % (sr(tWo + 1), sr(sWO + 1)))
        a('s_mov_b32 %s, %d' % (sr(tWo + 2), 4096 * 1152 + 4096)); a('s_mov_b32 %s, 0x20000' % sr(tWo + 3))
        a('s_mov_b32 %s, %s' % (sr(tOf), sr(sWS))); a('s_mov_b32 %s, %s' % (sr(tOf + 1), sr(sWS + 1)))
        a('s_mov_b32 %s, %d' % (sr(tOf + 2), OFRAG_BYTES)); a('s_mov_b32 %s, 0x20000' % sr(tOf + 3))
        a('s_add_u32 %s, %s, %d' % (sr(tP), sr(sWS), PART_OFF)); a('s_addc_u32 %s, %s, 0' % (sr(tP + 1), sr(sWS + 1)))
        a('s_mov_b32 %s, %d' % (sr(tP + 2), 240 * PART_TASK)); a('s_mov_b32 %s, 0x20000' % sr(tP + 3))
        self.flag_srd(tF)
        a('s_lshl_b32 %s, %s, 10' % (sr(tT0), sr(tKS))); a('s_lshl_b32 %s, %s, 4' % (sr(tT1), sr(sWV))); a('s_add_u32 %s, %s, %s' % (sr(tT0), sr(tT0), sr(tT1)))
        a('s_mul_i32 %s, %s, 1152' % (sr(tT0), sr(tT0))); a('s_mul_i32 %s, %s, 384' % (sr(tT1), sr(tNG))); a('s_add_u32 %s, %s, %s' % (sr(tWB), sr(tT0), sr(tT1)))
        a('s_mul_i32 %s, %s, 80' % (sr(tT0), sr(sBR))); a('s_lshl_b32 %s, %s, 3' % (sr(tT1), sr(tRG))); a('s_add_u32 %s, %s, %s' % (sr(tT0), sr(tT0), sr(tT1)))
        a('s_lshl_b32 %s, %s, 1' % (sr(tT1), sr(sWV))); a('s_add_u32 %s, %s, %s' % (sr(tT0), sr(tT0), sr(tT1)))
        a('s_lshl_b32 %s, %s, 17' % (sr(tT0), sr(tT0))); a('s_lshl_b32 %s, %s, 15' % (sr(tT1), sr(tKS))); a('s_add_u32 %s, %s, %s' % (sr(tOB), sr(tT0), sr(tT1)))
        a('s_mul_i32 %s, %s, 6144' % (sr(tM0), sr(sWV)))
        a('s_mul_i32 %s, s2, %d' % (sr(tPB), PART_TASK)); a('s_mul_i32 %s, %s, 24576' % (sr(tT0), sr(sWV))); a('s_add_u32 %s, %s, %s' % (sr(tPB), sr(tPB), sr(tT0)))

    def g_lane_w(self):
        a = self.a
        L = vr(vLANE)
        for k in range(3):
            a('v_add_u32 v11, %d, %s' % (64 * k, L))
            a('v_mul_u32_u24 v12, 2731, v11'); a('v_lshrrev_b32 v12, 16, v12')
            a('v_mul_u32_u24 v13, 24, v12'); a('v_sub_u32 v13, v11, v13')
            a('v_lshrrev_b32 v14, 1, v12'); a('v_and_b32 v14, 3, v14'); a('v_lshlrev_b32 v14, 1, v14'); a('v_xor_b32 v13, v13, v14')
            a('v_mul_u32_u24 v12, 1152, v12'); a('v_lshl_add_u32 %s, v13, 4, v12' % vr(253 + k))
        self.vOFW = 253
    def stage_off_ops(self, sg, dst, mul, base):
        return ['s_add_u32 %s, %s, %d' % (sr(tT0), sr(tROT), sg), 's_and_b32 %s, %s, 15' % (sr(tT0), sr(tT0)),
                's_mul_i32 %s, %s, %d' % (sr(tT0), sr(tT0), mul), 's_add_u32 %s, %s, %s' % (sr(dst), sr(tT0), sr(base))]
    def gw_ops(self, sg):
        ops = []
        for k in range(6):
            pre = []
            if k == 0: pre = self.stage_off_ops(sg, tST, 64 * 1152, tWB) + ['s_add_u32 m0, %s, %d' % (sr(tM0), (sg % NB) * STG)]
            if k == 3: pre = ['s_add_u32 m0, %s, %d' % (sr(tM0), (sg % NB) * STG + 3072)]
            kk = k % 3
            pre.append('s_add_u32 %s, %s, %d' % (sr(tSO), sr(tST), (k // 3) * 8 * 1152 - kk * 1024 + 4096))
            ops.append((pre, 'buffer_load_dwordx4 %s, %s, %s offen offset:%d lds' % (vr(self.vOFW + kk), sr(tWo, 4), sr(tSO), kk * 1024), ('W', sg)))
        return ops
    def gb_ops(self, kap):
        G = self.G
        sg, s = kap >> 1, kap & 1
        ops = []
        for e in range(2):
            if e == 0:
                pre = self.stage_off_ops(sg, tSO2, 2048, tOB)
                if s: pre.append('s_add_u32 %s, %s, 1024' % (sr(tSO2), sr(tSO2)))
            else: pre = ['s_add_u32 %s, %s, 131072' % (sr(tSO2), sr(tSO2))]
            ops.append((pre, 'buffer_load_dwordx4 %s, %s, %s, %s offen sc0 sc1' % (vr(G['vBF'] + 4 * ((kap % 8) * 2 + e), 4), vr(G['vL16']), sr(tOf, 4), sr(tSO2)), ('B', kap)))
        return ops
    def gdo(self, op):
        pre, txt, tag = op
        for p in pre: self.a(p)
        if pre and 'm0' in pre[-1]: self.a('s_nop 0')
        self.a(txt, tag=tag); self.q.vmem(tag)

    def g_main(self):
        a = self.a; G = self.G; n = self.name
        vACC, vAF, vBF, vAW, vL16 = G['vACC'], G['vAF'], G['vBF'], G['vAW'], G['vL16']
        a('v_lshlrev_b32 %s, 4, v252' % vr(vL16))
        a('v_lshrrev_b32 v1, 4, v252'); a('v_and_b32 v2, 15, v252'); a('v_lshrrev_b32 v6, 2, v2'); a('v_and_b32 v7, 3, v2')
        a('v_lshl_add_u32 v8, v1, 2, v6'); a('v_lshrrev_b32 v9, 1, v8'); a('v_and_b32 v9, 3, v9')
        a('v_mul_u32_u24 v8, 384, v8'); a('v_lshl_add_u32 v8, v7, 3, v8')
        for t in range(4):
            a('v_xor_b32 v10, %d, v9' % t); a('v_lshl_add_u32 %s, v10, 5, v8' % vr(vAW + t))
            a('v_add_u32 %s, %d, %s' % (vr(vAW + 4 + t), 2 * STG, vr(vAW + t)))
        a('s_lshl_b32 %s, %s, 7' % (sr(tT0), sr(tRG)))
        a('s_mul_i32 %s, %s, 52429' % (sr(tT1), sr(tT0))); a('s_lshr_b32 %s, %s, 23' % (sr(tT1), sr(tT1)))
        a('s_add_u32 %s, %s, 127' % (sr(tT0), sr(tT0))); a('s_mul_i32 %s, %s, 52429' % (sr(tT2), sr(tT0))); a('s_lshr_b32 %s, %s, 23' % (sr(tT2), sr(tT2)))
        a('v_mov_b32 v11, %s' % sr(tT1)); a('v_mov_b32 v12, %s' % sr(tT2))
        a('v_cmp_gt_u32 vcc, 8, v252'); a('s_nop 1'); a('v_cndmask_b32 v11, v12, v11, vcc')
        a('v_and_b32 v12, 3, v11'); a('v_and_b32 v13, 7, v252'); a('v_lshl_add_u32 v12, v12, 3, v13')
        a('s_and_b32 %s, s2, 7' % sr(tT0)); a('v_lshlrev_b32 v12, 3, v12'); a('v_add_u32 v12, %s, v12' % sr(tT0)); a('v_lshlrev_b32 v12, 7, v12')
        a('v_lshrrev_b32 v13, 2, v11'); a('v_add_u32 v13, 1, v13')
        self.poll('L_%s_p1' % n, tF, 12, 13, 14, 16, gate=True)
        self.q.vm = []
        a('s_barrier')
        self.mark()
        pro = self.gb_ops(0) + self.gb_ops(1) + self.gb_ops(2) + self.gb_ops(3)
        for op in pro: self.gdo(op)
        pend = self.gb_ops(4) + self.gb_ops(5)
        LB = 6; NM = 32 * 24; LA = self.opts.get('gla', 7)
        def aread(ai):
            kap, nt = ai // 12, ai % 12
            sg, s = kap >> 1, kap & 1
            buf = sg % NB
            imm = (buf & 1) * STG + 32 * s * 384 + (nt & ~3) * 32
            for z in range(2):
                self.ds('ds_read_b64_tr_b16 %s, %s offset:%d' % (vr(vAF + 4 * (ai % 8) + 2 * z, 2), vr(vAW + 4 * (buf >> 1) + (nt & 3)), imm + 16 * z * 384), ('A', ai), srctag=('W', sg))
        issue = {}; bar_at = {}
        for sg in range(16):
            m0 = 48 * sg
            gbar = m0 - 2 * LA + 4 if sg > 0 else -1
            bar_at[gbar] = sg
            for ai in range(m0 // 2, m0 // 2 + 24):
                g = 2 * (ai - LA)
                if g < gbar: g = gbar + (ai - m0 // 2) // 2 if sg > 0 else gbar
                issue.setdefault(g, []).append(ai)
        for g in range(-1, NM):
            if g >= 0:
                kap, nt, e = g // 24, (g % 24) // 2, g % 2
                self.wait(lg=[('A', g // 2)], vm=[('B', kap)])
                d = vr(vACC + (e * 12 + nt) * 4, 4)
                a('%s %s, %s, %s, %s' % (MF, d, vr(vAF + 4 * ((g // 2) % 8), 4), vr(vBF + 4 * ((kap % 8) * 2 + e), 4), '0' if kap == 0 else d))
                if g % 24 == 23 and kap + LB < 32: pend += self.gb_ops(kap + LB)
            if g in bar_at:
                sg = bar_at[g]
                if sg >= 3: self.wait(vm=[('W', sg)])
                elif sg == 0: pass
                self.q.lg = []; a('s_waitcnt lgkmcnt(0)')
                if sg > 0: a('s_barrier')
                if sg in (4, 8, 12): self.mark()
                if sg + NB - 1 < 16: pend += self.gw_ops(sg + NB - 1)
            for ai in sorted(issue.get(g, [])): aread(ai)
            if pend and g % 2 == 1 and g not in bar_at: self.gdo(pend.pop(0))
        assert not pend
        self.mark()
        a('s_nop 7')
        pol = self.opts.get('ppol', 'sc0 sc1')
        for e in range(2):
            for nt in range(12):
                t = e * 12 + nt
                if t % 4 == 0: a('s_add_u32 %s, %s, %d' % (sr(tSO), sr(tPB), t * 1024))
                a('buffer_store_dwordx4 %s, %s, %s, %s offen offset:%d%s' % (vr(vACC + 4 * t, 4), vr(vL16), sr(tP, 4), sr(tSO), (t % 4) * 1024, (' ' + pol) if pol else ''))
        a('s_waitcnt vmcnt(0)'); self.q.vm = []
        a('s_barrier')
        self.flag_store(3, tF, 100, 101, 'L_%s_f3' % n)

    def r_phase(self):
        a = self.a; n = self.name; G = self.G
        vL16 = G['vL16']
        a('s_lshl_b32 %s, %s, 3' % (sr(tT0), sr(tI))); a('s_lshl_b32 %s, %s, 2' % (sr(tT1), sr(sBR))); a('s_add_u32 %s, %s, %s' % (sr(tT0), sr(tT0), sr(tT1)))
        a('v_add_u32 v12, %s, v252' % sr(tT0)); a('v_lshlrev_b32 v12, 7, v12'); a('v_mov_b32 v13, 3')
        a('s_mul_i32 %s, %s, %d' % (sr(tSO), sr(tT0), PART_TASK)); a('s_mul_i32 %s, %s, 24576' % (sr(tT1), sr(tKS))); a('s_add_u32 %s, %s, %s' % (sr(tSO), sr(tSO), sr(tT1)))
        a('s_mul_i32 %s, %s, 6144' % (sr(tT1), sr(sWV))); a('s_add_u32 %s, %s, %s' % (sr(tSO), sr(tSO), sr(tT1)))
        a('s_mov_b32 %s, %s' % (sr(tOut), sr(sOUT))); a('s_mov_b32 %s, %s' % (sr(tOut + 1), sr(sOUT + 1))); a('s_mov_b32 %s, %d' % (sr(tOut + 2), OUT_BYTES)); a('s_mov_b32 %s, 0x20000' % sr(tOut + 3))
        a('v_and_b32 v4, 15, v252'); a('v_lshrrev_b32 v5, 4, v252')
        a('s_lshl_b32 %s, %s, 3' % (sr(tT1), sr(tRG))); a('s_lshl_b32 %s, %s, 1' % (sr(tT2), sr(tKS))); a('s_add_u32 %s, %s, %s' % (sr(tT1), sr(tT1), sr(tT2)))
        a('s_lshr_b32 %s, %s, 1' % (sr(tT2), sr(sWV))); a('s_add_u32 %s, %s, %s' % (sr(tT1), sr(tT1), sr(tT2))); a('s_lshl_b32 %s, %s, 4' % (sr(tT1), sr(tT1)))
        a('v_add_u32 v4, %s, v4' % sr(tT1)); a('v_mul_u32_u24 v4, 2304, v4')
        a('v_and_b32 v6, 1, v5'); a('v_lshlrev_b32 v6, 5, v6'); a('v_lshrrev_b32 v7, 1, v5'); a('v_lshl_add_u32 v6, v7, 4, v6'); a('v_add_u32 v4, v4, v6')
        a('s_mul_i32 %s, %s, 1152' % (sr(tT1), sr(sBR))); a('s_mul_i32 %s, %s, 384' % (sr(tT2), sr(tNG))); a('s_add_u32 %s, %s, %s' % (sr(tT1), sr(tT1), sr(tT2)))
        a('s_and_b32 %s, %s, 1' % (sr(tT2), sr(sWV))); a('s_mul_i32 %s, %s, 192' % (sr(tT2), sr(tT2))); a('s_add_u32 %s, %s, %s' % (sr(tST), sr(tT1), sr(tT2)))
        self.poll('L_%s_p2' % n, tF, 12, 13, 14, 4)
        a('s_barrier')
        self.mark()
        for k in range(4):
            for t in range(6):
                if t == 4: a('s_add_u32 %s, %s, 4096' % (sr(tSO2), sr(tSO)))
                a('buffer_load_dwordx4 %s, %s, %s, %s offen offset:%d sc0 sc1' % (vr(16 + k * 24 + 4 * t, 4), vr(vL16), sr(tP, 4), sr(tSO if t < 4 else tSO2), (t % 4) * 1024))
            if k < 3: a('s_add_u32 %s, %s, %d' % (sr(tSO), sr(tSO), PART_TASK))
        a('s_waitcnt vmcnt(12)')
        for r in range(0, 24, 2): a('v_pk_add_f32 %s, %s, %s' % (vr(16 + r, 2), vr(16 + r, 2), vr(40 + r, 2)))
        a('s_waitcnt vmcnt(0)')
        for r in range(0, 24, 2): a('v_pk_add_f32 %s, %s, %s' % (vr(64 + r, 2), vr(64 + r, 2), vr(88 + r, 2)))
        for r in range(0, 24, 2): a('v_pk_add_f32 %s, %s, %s' % (vr(16 + r, 2), vr(16 + r, 2), vr(64 + r, 2)))
        for r in range(12): a('v_cvt_pk_bf16_f32 %s, %s, %s' % (vr(120 + r), vr(16 + 2 * r), vr(17 + 2 * r)))
        a('s_nop 1')
        for p in range(3):
            a('v_permlane16_swap_b32 %s, %s' % (vr(120 + 4 * p), vr(122 + 4 * p))); a('v_permlane16_swap_b32 %s, %s' % (vr(121 + 4 * p), vr(123 + 4 * p)))
        a('s_nop 1')
        for p in range(3):
            a('buffer_store_dwordx4 %s, v4, %s, %s offen offset:%d' % (vr(120 + 4 * p, 4), sr(tOut, 4), sr(tST), p * 64))

    def build(self):
        a = self.a; n = self.name
        marks = {}
        self.entry()
        self.entry_extra()
        self.g_lane_w()
        self.init_flags()
        self.prof_init()
        self.mark()
        self.phase_q()
        a('s_mov_b32 %s, 0' % sr(sITEM))
        for p in self.off_ops(sOFFK, 3): a(p)
        for p in self.off_ops(sOFFV, 2): a(p)
        self.mark()
        marks['item'] = len(a.ins)
        a('L_%s_item:' % n)
        self.item_prologue()
        self.body(True, 0)
        a('s_cmp_eq_u32 %s, 1' % sr(sITEM)); a('s_cbranch_scc0 L_%s_nopub' % n)
        self.flag_srd(96)
        self.flag_store(1, 96, vM0, vM1, 'L_%s_f1' % n)
        a('L_%s_nopub:' % n)
        a('s_mov_b32 %s, 7' % sr(sLOOP))
        save = self.a; self.a = Asm(hist=save.ins); self.body(False, 2); self.a = save
        marks['loop'] = len(a.ins)
        a('L_%s_loop:' % n)
        self.body(False, 4)
        if self.prof:
            a('s_and_b32 s85, %s, 1' % sr(sLOOP)); a('s_cmp_eq_u32 s85, 1'); a('s_cbranch_scc0 L_%s_nomark' % n)
            self.mark()
            a('L_%s_nomark:' % n)
        a('s_sub_u32 %s, %s, 1' % (sr(sLOOP), sr(sLOOP))); a('s_cmp_lg_u32 %s, 0' % sr(sLOOP)); a('s_cbranch_scc1 L_%s_loop' % n)
        marks['tail'] = len(a.ins)
        self.tail_c()
        self.mark()
        a('s_cmp_eq_u32 %s, 1' % sr(sITEM)); a('s_cbranch_scc0 L_%s_nowo' % n)
        a('s_cmp_ge_u32 s2, 240'); a('s_cbranch_scc1 L_%s_nowo' % n)
        qsave = list(self.q.vm)
        self.g_setup()
        for sg in range(3):
            for op in self.gw_ops(sg): self.gdo(op)
        a('L_%s_nowo:' % n)
        self.q.vm = qsave
        self.epilogue()
        self.mark()
        a('s_cmp_eq_u32 %s, 1' % sr(sITEM)); a('s_cbranch_scc1 L_%s_tail' % n)
        marks['switch'] = len(a.ins)
        self.item_switch()
        a('s_mov_b32 %s, 1' % sr(sITEM))
        a('s_branch L_%s_item' % n)
        marks['end'] = len(a.ins)
        a('L_%s_tail:' % n)
        a('s_waitcnt vmcnt(0)'); self.q.vm = []
        a('s_barrier')
        self.flag_srd(96)
        self.flag_store(2, 96, vM0, vM1, 'L_%s_f2' % n)
        self.mark()
        a('s_cmp_ge_u32 s2, 240'); a('s_cbranch_scc1 L_%s_end' % n)
        marks['g'] = len(a.ins)
        self.g_main()
        self.mark()
        self.r_phase()
        if self.prof:
            a('s_waitcnt vmcnt(0)'); self.mark()
        a('L_%s_end:' % n)
        a('s_endpgm')
        self.marks = marks
        return self.a
    def runtime_seq(self):
        I = self.a.ins; m = self.marks
        pre = I[:m['item']]; pro = I[m['item']:m['loop']]; lp = I[m['loop']:m['tail']]; tl = I[m['tail']:m['switch']]; sw = I[m['switch']:m['end']]; fin = I[m['end']:]
        seq = list(pre)
        for item in range(2):
            o = 16 * item
            seq += retag(pro, o)
            for k in range(7): seq += retag(lp, o + 2 * (k + 1) - 4)
            seq += retag(tl, o)
            if item == 0: seq += sw
        return seq + fin

if __name__ == '__main__':
    g = GenF(name='attn', opts={'maxfl': 5, 'xpol': ''}, ostore='sc0 sc1'); asm = g.build()
    print(asm.count(), 'instructions', 'mfma', asm.count('mfma'), 'autofix nops', asm.nfix)
    seq = g.runtime_seq()
    pr = check_hazards(seq, 'F'); print(len(pr), 'hazard problems'); print('\n'.join(pr[:20]))
    pr = check_waits(seq, 'F'); print(len(pr), 'wait problems'); print('\n'.join(pr[:20]))
    open('f_dump.s', 'w').write(asm.text())
```
